```python
import torch

def _softmax(x, axis=-1):
    return torch.softmax(x, dim=axis)
def _gelu(x):
    return torch.nn.functional.gelu(x, approximate="tanh")
def _silu(x):
    return torch.nn.functional.silu(x)
def _sigmoid(x):
    return torch.sigmoid(x)
def _layernorm(x, axis=-1, eps=1e-5):
    m = x.mean(dim=axis, keepdim=True)
    v = x.var(dim=axis, keepdim=True, unbiased=False)
    return (x - m) / torch.sqrt(v + eps)
def _scatter_add(tgt, idx, src, axis=0):
    return tgt.clone().index_add_(axis, idx, src)
def _segment_sum(src, seg, n):
    out = torch.zeros((n,) + src.shape[1:], dtype=src.dtype)
    return out.index_add_(0, seg, src)
def _pad(x, pw):
    flat = tuple(v for pair in reversed(pw) for v in pair)
    return torch.nn.functional.pad(x, flat)

kernel_name = 'concat_heads__sliding_block_cached__sliding_block_cached__decode'

def setup_inputs():

    _w = (lambda a: (lambda t: t.to(torch.bfloat16) if t.is_floating_point() else t)(torch.as_tensor(a)))
    def _A_setup():
        B, Sq, D = 2, 1, 512
        Hq, Hkv, Sk, Dh = 32, 32, 8192, 128
        assert Hq % Hkv == 0, (Hq, Hkv)
        return {
            "x": _w((lambda *s: torch.randn(*s, dtype=torch.bfloat16) * 0.8)(B, Sq, D)),
            "k_cache": _w((lambda *s: torch.randn(*s, dtype=torch.bfloat16) * 1.6)(B, Hkv, Sk, Dh)),
            "v_cache": _w((lambda *s: torch.randn(*s, dtype=torch.bfloat16) * 0.2)(B, Hkv, Sk, Dh)),
            "wq": _w((lambda *s: torch.randn(*s, dtype=torch.bfloat16) * 1.6)(D, Hq * Dh) * (D ** -0.5)),
            "wo": _w((lambda *s: torch.randn(*s, dtype=torch.bfloat16) * 0.2)(Hq * Dh, D) * ((Hq * Dh) ** -0.5)),
        }
    _A_in = _A_setup()

    def _B_setup():
        B, Sq, D = 2, 1, 512
        Hq, Hkv, Sk, Dh = 32, 32, 8192, 128
        assert Hq % Hkv == 0, (Hq, Hkv)
        return {
            "x": _w((lambda *s: torch.randn(*s, dtype=torch.bfloat16) * 0.8)(B, Sq, D)),
            "k_cache": _w((lambda *s: torch.randn(*s, dtype=torch.bfloat16) * 1.6)(B, Hkv, Sk, Dh)),
            "v_cache": _w((lambda *s: torch.randn(*s, dtype=torch.bfloat16) * 0.2)(B, Hkv, Sk, Dh)),
            "wq": _w((lambda *s: torch.randn(*s, dtype=torch.bfloat16) * 1.6)(D, Hq * Dh) * (D ** -0.5)),
            "wo": _w((lambda *s: torch.randn(*s, dtype=torch.bfloat16) * 0.2)(Hq * Dh, D) * ((Hq * Dh) ** -0.5)),
        }
    _B_in = _B_setup()

    return {
        "A_x": _A_in["x"],
        "A_k_cache": _A_in["k_cache"],
        "A_v_cache": _A_in["v_cache"],
        "A_wq": _A_in["wq"],
        "A_wo": _A_in["wo"],
        "B_x": _B_in["x"],
        "B_k_cache": _B_in["k_cache"],
        "B_v_cache": _B_in["v_cache"],
        "B_wq": _B_in["wq"],
        "B_wo": _B_in["wo"],
    }

def reference(A_x, A_k_cache, A_v_cache, A_wq, A_wo, B_x, B_k_cache, B_v_cache, B_wq, B_wo):
    def _A_ref(x, k_cache, v_cache, wq, wo):
        B, Sq, D = x.shape
        Hq, Dh = 32, 128
        Hkv, Sk = k_cache.shape[1], k_cache.shape[2]
        W = min(4096, max(256, Sk // 4))
        rep = Hq // Hkv
        q = (lambda x, *d: x.permute(*d))((x @ wq).reshape(B, Sq, Hq, Dh), 0, 2, 1, 3)
        k = (lambda x, n, axis: torch.repeat_interleave(x, n, dim=axis))(k_cache[:, :, Sk - W:, :], rep, axis=1)
        v = (lambda x, n, axis: torch.repeat_interleave(x, n, dim=axis))(v_cache[:, :, Sk - W:, :], rep, axis=1)
        scores = torch.einsum("bhqd,bhkd->bhqk", q, k) * (Dh ** -0.5)
        p = _softmax(scores, axis=-1)
        o = torch.einsum("bhqk,bhkd->bhqd", p, v)
        return (lambda x, *d: x.permute(*d))(o, 0, 2, 1, 3).reshape(B, Sq, Hq * Dh) @ wo

    def _B_ref(x, k_cache, v_cache, wq, wo):
        B, Sq, D = x.shape
        Hq, Dh = 32, 128
        Hkv, Sk = k_cache.shape[1], k_cache.shape[2]
        W = min(4096, max(256, Sk // 4))
        rep = Hq // Hkv
        q = (lambda x, *d: x.permute(*d))((x @ wq).reshape(B, Sq, Hq, Dh), 0, 2, 1, 3)
        k = (lambda x, n, axis: torch.repeat_interleave(x, n, dim=axis))(k_cache[:, :, Sk - W:, :], rep, axis=1)
        v = (lambda x, n, axis: torch.repeat_interleave(x, n, dim=axis))(v_cache[:, :, Sk - W:, :], rep, axis=1)
        scores = torch.einsum("bhqd,bhkd->bhqk", q, k) * (Dh ** -0.5)
        p = _softmax(scores, axis=-1)
        o = torch.einsum("bhqk,bhkd->bhqd", p, v)
        return (lambda x, *d: x.permute(*d))(o, 0, 2, 1, 3).reshape(B, Sq, Hq * Dh) @ wo

    a = _A_ref(A_x, A_k_cache, A_v_cache, A_wq, A_wo)
    b = _B_ref(B_x, B_k_cache, B_v_cache, B_wq, B_wo)
    return torch.concatenate([a, b], axis=-1)
```

```python
import re

TRANS = ("v_exp_", "v_log_", "v_rcp_", "v_rsq_", "v_sqrt_", "v_sin_", "v_cos_")

def regs_of(tok):
    tok = tok.strip()
    tok = tok.replace("abs(", "").replace(")", "").lstrip("-").strip("|")
    m = re.fullmatch(r"([vsa])(\d+)", tok)
    if m:
        return {(m.group(1), int(m.group(2)))}
    m = re.fullmatch(r"([vsa])\[(\d+):(\d+)\]", tok)
    if m:
        return {(m.group(1), i) for i in range(int(m.group(2)), int(m.group(3)) + 1)}
    if tok in ("vcc", "vcc_lo", "vcc_hi"):
        return {("vcc", 0)}
    if tok in ("exec", "exec_lo", "exec_hi"):
        return {("exec", 0)}
    if tok == "m0":
        return {("m0", 0)}
    return set()

class Ins:
    __slots__ = ("text", "op", "kind", "wr", "rd", "srcc", "srcab", "dpp", "trans", "dl", "ws", "storedata", "passes", "lanesel")
    def __init__(self, text):
        self.text = text
        t = text.split(";")[0].strip()
        parts = t.split(None, 1)
        self.op = parts[0]
        rest = parts[1] if len(parts) > 1 else ""
        ops = [o.strip() for o in rest.split(",")] if rest else []
        ops2 = []
        depth = 0
        cur = ""
        for ch in rest:
            if ch == "[":
                depth += 1
            if ch == "]":
                depth -= 1
            if ch == "," and depth == 0:
                ops2.append(cur.strip()); cur = ""
            else:
                cur += ch
        if cur.strip():
            ops2.append(cur.strip())
        ops = ops2
        mods = ""
        if ops:
            last = ops[-1].split(None, 1)
            ops[-1] = last[0]
            mods = last[1] if len(last) > 1 else ""
        op = self.op
        self.wr = set(); self.rd = set(); self.srcc = set(); self.srcab = set()
        self.dpp = False; self.trans = False; self.dl = False; self.ws = 1
        self.storedata = set(); self.passes = 0; self.lanesel = set()
        R = [regs_of(o) for o in ops]
        if op == "s_nop":
            self.kind = "nop"; self.ws = int(ops[0], 0) + 1
        elif op.startswith("v_mfma"):
            self.kind = "mfma"
            self.wr = R[0]; self.srcab = R[1] | R[2]; self.srcc = R[3]; self.rd = self.srcab | self.srcc
            self.passes = 8 if "32x32" in op else 4
        elif op.startswith("v_"):
            self.kind = "valu"
            self.dpp = ("_dpp" in op) or ("row_" in mods) or ("quad_perm" in mods) or ("wave_" in mods)
            self.trans = op.startswith(TRANS)
            self.dl = op.startswith("v_dot")
            if op.startswith("v_permlane") and "swap" in op:
                self.wr = R[0] | R[1]; self.rd = R[0] | R[1]
            elif op.startswith("v_cmp"):
                self.wr = R[0]; self.rd = set().union(*R[1:])
                assert not op.startswith("v_cmpx")
            elif op.startswith(("v_add_co", "v_sub_co", "v_addc_co", "v_subb_co")):
                self.wr = R[0] | R[1]; self.rd = set().union(*R[2:])
            else:
                self.wr = R[0]; self.rd = set().union(*R[1:]) if len(R) > 1 else set()
                if op.startswith(("v_dot2c", "v_fmac", "v_pk_fmac")) or self.dpp:
                    self.rd |= R[0]
                if op.startswith(("v_readlane", "v_writelane")):
                    self.lanesel = R[2]
                if op.startswith("v_cndmask") and len(R) == 3:
                    self.rd |= {("vcc", 0)}
        elif op.startswith(("buffer_", "global_", "flat_")):
            self.kind = "vmem"
            if op.startswith(("buffer_wbl2", "buffer_inv")):
                pass
            elif op.startswith("buffer_load"):
                if "lds" in mods.split():
                    self.rd = set().union(*R) | {("m0", 0)}
                else:
                    self.wr = R[0]; self.rd = set().union(*R[1:])
            elif op.startswith("buffer_store"):
                self.rd = set().union(*R)
                if "x3" in op or "x4" in op:
                    self.storedata = R[0]
            elif op.startswith("buffer_atomic"):
                self.rd = set().union(*R)
                if "sc0" in mods.split():
                    self.wr = R[0]
            elif op.startswith("global_load"):
                self.wr = R[0]; self.rd = set().union(*R[1:])
            elif op.startswith("global_store"):
                self.rd = set().union(*R)
                if "x3" in op or "x4" in op:
                    self.storedata = R[1]
            elif op.startswith("global_atomic"):
                if "sc0" in mods.split():
                    self.wr = R[0]; self.rd = set().union(*R[1:])
                else:
                    self.rd = set().union(*R)
            else:
                raise ValueError(text)
        elif op.startswith("ds_"):
            self.kind = "ds"
            if op.startswith(("ds_read", "ds_bpermute", "ds_permute", "ds_swizzle")) or "_rtn" in op:
                self.wr = R[0]; self.rd = set().union(*R[1:])
            else:
                self.rd = set().union(*R)
        elif op.startswith("s_"):
            self.kind = "salu"
            if op.startswith(("s_cmp", "s_cbranch", "s_branch", "s_waitcnt", "s_barrier", "s_endpgm", "s_sleep", "s_setprio", "s_bitcmp")):
                self.rd = set().union(*R) if R else set()
            else:
                self.wr = R[0] if R else set(); self.rd = set().union(*R[1:]) if len(R) > 1 else set()
                if "saveexec" in op:
                    self.wr |= {("exec", 0)}
        else:
            raise ValueError("unknown op " + text)

def need(p, c):
    n = 0
    vw = {r for r in p.wr if r[0] in ("v", "a")}
    sw = {r for r in p.wr if r[0] in ("s", "vcc")}
    if p.kind == "valu":
        if c.kind == "valu" and c.dpp and (vw & c.rd): n = max(n, 2)
        if c.kind == "mfma" and (vw & c.rd): n = max(n, 2)
        if c.kind == "valu" and c.op.startswith("v_permlane") and (vw & c.rd): n = max(n, 2)
        if c.kind == "valu" and c.op.startswith(("v_readlane", "v_readfirstlane")) and (vw & c.rd): n = max(n, 1)
        if p.trans and c.kind in ("valu", "mfma", "ds", "vmem") and (vw & (c.rd | c.wr)): n = max(n, 1)
        if p.dl:
            if c.op == p.op and c.kind == "valu" and not c.dpp:
                ab = c.rd - c.wr if c.op.startswith("v_dot2c") else None
                if ab is None:
                    n = max(n, 3) if (vw & c.rd) else n
                elif vw & ab: n = max(n, 3)
            elif vw & (c.rd | c.wr): n = max(n, 3)
        if sw:
            if c.kind == "valu" and (sw & c.rd): n = max(n, 2)
            if c.kind == "valu" and (sw & c.lanesel): n = max(n, 4)
            if c.kind == "vmem" and (sw & c.rd): n = max(n, 5)
            if c.kind == "salu" and (sw & c.rd): n = max(n, 1)
    if p.kind == "mfma":
        tab = {4: (8, 6, 3), 8: (12, 10, 7)}[p.passes]
        if c.kind in ("valu", "vmem", "ds") and (p.wr & (c.rd | c.wr)): n = max(n, tab[0])
        if c.kind == "mfma":
            if p.wr & c.srcab: n = max(n, tab[0])
            if (p.wr & c.srcc) and not (p.wr == c.srcc and p.passes == c.passes): n = max(n, tab[1])
            if (p.wr & c.wr) and not (p.wr == c.srcc): n = max(n, tab[0])
        if c.kind == "valu" and (p.srcc & c.wr): n = max(n, tab[2])
    if p.kind == "vmem" and p.storedata:
        if c.kind == "valu" and (p.storedata & c.wr): n = max(n, 2)
        elif p.storedata & c.wr: n = max(n, 1)
    if p.kind == "salu" and ("m0", 0) in p.wr and ("m0", 0) in c.rd and c.kind != "salu": n = max(n, 1)
    return n

class Asm:
    def __init__(self):
        self.lines = []
        self.vm = []
        self.nlabel = 0
        self.hist = []
    def raw(self, s):
        self.lines.append(s)
    def label(self, name):
        self.lines.append(name + ":")
    def newlabel(self, base="L"):
        self.nlabel += 1
        return "%s_%d" % (base, self.nlabel)
    def i(self, text, tag=None):
        ins = Ins(text)
        dist = 0
        req = 0
        for p in reversed(self.hist):
            r = need(p, ins) - dist
            if r > req: req = r
            dist += p.ws
            if dist >= 20: break
        while req > 0:
            k = min(req, 16)
            nop = Ins("s_nop %d" % (k - 1))
            self.lines.append("    " + nop.text)
            self.hist.append(nop)
            req -= k
        self.lines.append("    " + text)
        self.hist.append(ins)
        if len(self.hist) > 40: self.hist = self.hist[-40:]
        if ins.kind == "vmem" and not ins.op.startswith(("buffer_wbl2", "buffer_inv")):
            self.vm.append(tag)
            assert len(self.vm) <= 63, "too many outstanding vmem"
        return ins
    def flush_hazards(self, n=12):
        self.i("s_nop %d" % (n - 1))
    def wait_vm(self, tag, extra=""):
        if tag not in self.vm:
            if extra: self.i("s_waitcnt " + extra)
            return
        idx = len(self.vm) - 1 - self.vm[::-1].index(tag)
        n = len(self.vm) - 1 - idx
        self.i("s_waitcnt vmcnt(%d)%s" % (n, (" " + extra) if extra else ""))
        self.vm = self.vm[idx + 1:]
    def wait_vm_all(self):
        self.i("s_waitcnt vmcnt(0)")
        self.vm = []
    def text(self):
        return "\n".join(self.lines) + "\n"
```

```python
import sys
from asmlib import Asm

NAME = "concat_heads__sliding_block_cached__sliding_block_cached__decode"
HDR = open("cdna_kernels/%s.s.ref" % NAME).read().split("; Override launch")[0]

LOG2E = 0x3fb8aa3b
SCALE = 0x3db504f3
WS_ML = 1 << 20
WS_TS = 2 << 20

def srd(a, d, lo, hi, size):
    a.i("s_mov_b32 s%d, s%d" % (d, lo))
    a.i("s_mov_b32 s%d, s%d" % (d + 1, hi))
    a.i("s_mov_b32 s%d, 0x%x" % (d + 2, size))
    a.i("s_mov_b32 s%d, 0x20000" % (d + 3))

def vr(base, n=4):
    return "v[%d:%d]" % (base, base + n - 1)

def kd(name, vgpr, sgpr):
    acc = (vgpr + 3) // 4 * 4
    return """.section .rodata,"a"
.p2align 6
.amdhsa_kernel %s
  .amdhsa_next_free_vgpr %d
  .amdhsa_next_free_sgpr %d
  .amdhsa_accum_offset %d
  .amdhsa_group_segment_fixed_size 0
  .amdhsa_kernarg_size 104
  .amdhsa_user_sgpr_count 2
  .amdhsa_user_sgpr_kernarg_segment_ptr 1
  .amdhsa_system_sgpr_workgroup_id_x 1
.end_amdhsa_kernel
.text
""" % (name, vgpr, sgpr, acc)

def gen(nt=True, interleave=False, ts=False):
    NW = 8
    a = Asm()
    kname = NAME + "_kernel"
    a.raw(".globl %s\n.p2align 8\n.type %s,@function\n%s:" % (kname, kname, kname))
    SK, SV, SWQ, SWO, SX, SWS = 44, 48, 52, 56, 60, 64
    s_br, s_h, s_b, s_half, s_wave = 4, 5, 6, 7, 8
    s_kvbase, s_off, s_wqbase, s_wobase, s_tmp = 9, 10, 11, 12, 13
    s_m1, s_m0 = 70, 72
    s_log2e, s_scale = 74, 75
    s_voff, s_wooff = 76, 77
    s_ts = 80
    def stamp(idx):
        if not ts: return
        a.i("s_memrealtime s[%d:%d]" % (s_ts + 2 * idx, s_ts + 2 * idx + 1))
    a.i("s_cmp_ge_u32 s2, 256")
    a.i("s_cbranch_scc1 L_end1")
    a.i("s_load_dwordx16 s[16:31], s[0:1], 0")
    a.i("s_load_dwordx8 s[32:39], s[0:1], 64")
    a.i("s_load_dwordx2 s[40:41], s[0:1], 96")
    stamp(0)
    a.i("s_lshr_b32 s%d, s2, 7" % s_br)
    a.i("s_lshr_b32 s%d, s2, 5" % s_tmp)
    a.i("s_and_b32 s%d, s%d, 3" % (s_tmp, s_tmp))
    a.i("s_lshl_b32 s%d, s%d, 3" % (s_tmp, s_tmp))
    a.i("s_and_b32 s%d, s2, 7" % s_h)
    a.i("s_or_b32 s%d, s%d, s%d" % (s_h, s_h, s_tmp))
    a.i("s_bfe_u32 s%d, s2, 0x10004" % s_b)
    a.i("s_bfe_u32 s%d, s2, 0x10003" % s_half)
    a.i("s_lshl_b32 s%d, s%d, 26" % (s_kvbase, s_b))
    a.i("s_lshl_b32 s%d, s%d, 21" % (s_tmp, s_h))
    a.i("s_add_u32 s%d, s%d, s%d" % (s_kvbase, s_kvbase, s_tmp))
    a.i("s_lshl_b32 s%d, s%d, 18" % (s_tmp, s_half))
    a.i("s_add_u32 s%d, s%d, s%d" % (s_kvbase, s_kvbase, s_tmp))
    a.i("s_add_u32 s%d, s%d, 0x%x" % (s_kvbase, s_kvbase, 6144 * 256))
    a.i("s_lshl_b32 s%d, s%d, 8" % (s_wqbase, s_h))
    a.i("s_lshl_b32 s%d, s%d, 17" % (s_wobase, s_h))
    v_lane, v_kv, v_wq, v_wo, v_x = 1, 2, 3, 4, 5
    v_g, v_c = 6, 7
    v_mask = 8
    v_A = [12, 16]
    v_D = 20
    v_q = 24
    v_s = [28, 29]
    v_t0 = 30
    v_T = 40
    SLOT0 = 56
    NSLOT = (256 - SLOT0) // 4
    free = list(range(NSLOT))
    slot = lambda k: SLOT0 + 4 * k
    a.i("v_and_b32 v%d, 63, v0" % v_lane)
    a.i("v_lshrrev_b32 v%d, 6, v0" % v_t0)
    a.i("v_readfirstlane_b32 s%d, v%d" % (s_wave, v_t0))
    a.i("v_lshrrev_b32 v%d, 4, v%d" % (v_g, v_lane))
    a.i("v_and_b32 v%d, 15, v%d" % (v_c, v_lane))
    a.i("v_lshlrev_b32 v%d, 1, v0" % v_x)
    a.i("s_lshl_b32 s%d, s%d, 10" % (s_off, s_b))
    a.i("v_and_b32 v%d, 0x1f0, v0" % v_wq)
    a.i("v_lshlrev_b32 v%d, 13, v%d" % (v_wq, v_wq))
    a.i("v_lshl_add_u32 v%d, v%d, 4, v%d" % (v_wq, v_c, v_wq))
    if interleave:
        a.i("v_lshlrev_b32 v%d, 4, v0" % v_kv)
    else:
        a.i("v_lshlrev_b32 v%d, 15, v%d" % (v_kv, v_t0))
        a.i("v_lshl_add_u32 v%d, v%d, 4, v%d" % (v_kv, v_lane, v_kv))
    a.i("s_waitcnt lgkmcnt(0)")
    a.i("s_cmp_eq_u32 s%d, 0" % s_br)
    a.i("s_cselect_b32 s%d, s16, s26" % SX)
    a.i("s_cselect_b32 s%d, s17, s27" % (SX + 1))
    a.i("s_mov_b32 s%d, 2048" % (SX + 2))
    a.i("s_mov_b32 s%d, 0x20000" % (SX + 3))
    a.i("s_cselect_b32 s%d, s22, s32" % SWQ)
    a.i("s_cselect_b32 s%d, s23, s33" % (SWQ + 1))
    a.i("s_mov_b32 s%d, 0x400000" % (SWQ + 2))
    a.i("s_mov_b32 s%d, 0x20000" % (SWQ + 3))
    a.i("buffer_load_ushort v%d, v%d, s[%d:%d], s%d offen" % (v_x, v_x, SX, SX + 3, s_off), tag="x")
    a.i("s_cselect_b32 s%d, s18, s28" % SK)
    a.i("s_cselect_b32 s%d, s19, s29" % (SK + 1))
    a.i("s_mov_b32 s%d, 0x8000000" % (SK + 2))
    a.i("s_mov_b32 s%d, 0x20000" % (SK + 3))
    a.i("s_cselect_b32 s%d, s20, s30" % SV)
    a.i("s_cselect_b32 s%d, s21, s31" % (SV + 1))
    a.i("s_mov_b32 s%d, 0x8000000" % (SV + 2))
    a.i("s_mov_b32 s%d, 0x20000" % (SV + 3))
    a.i("s_cselect_b32 s%d, s24, s34" % SWO)
    a.i("s_cselect_b32 s%d, s25, s35" % (SWO + 1))
    a.i("s_mov_b32 s%d, 0x400000" % (SWO + 2))
    a.i("s_mov_b32 s%d, 0x20000" % (SWO + 3))
    where = {}
    def load_wq(i):
        k = free.pop(0); where[("wq", i)] = k
        if i == 0:
            a.i("s_mov_b32 s%d, s%d" % (s_off, s_wqbase))
        else:
            a.i("s_add_u32 s%d, s%d, 8192" % (s_off, s_off))
        a.i("buffer_load_dwordx4 %s, v%d, s[%d:%d], s%d offen" % (vr(slot(k)), v_wq, SWQ, SWQ + 3, s_off), tag=("wq", i))
    NTS = " nt" if nt else ""
    def load_kv(kind, i):
        k = free.pop(0); where[(kind, i)] = k
        srdr = SK if kind == "k" else SV
        so = s_off if kind == "k" else s_voff
        if interleave:
            if i == 0: a.i("s_mov_b32 s%d, s%d" % (so, s_kvbase))
            else: a.i("s_add_u32 s%d, s%d, 8192" % (so, so))
            off = 0
        else:
            if i == 0: a.i("s_mov_b32 s%d, s%d" % (so, s_kvbase))
            elif i % 4 == 0: a.i("s_add_u32 s%d, s%d, 4096" % (so, so))
            off = (i % 4) * 1024
        a.i("buffer_load_dwordx4 %s, v%d, s[%d:%d], s%d offen offset:%d%s" % (vr(slot(k)), v_kv, srdr, srdr + 3, so, off, NTS), tag=(kind, i))
    def load_wo(i):
        k = free.pop(0); where[("wo", i)] = k
        if i == 0: a.i("s_mov_b32 s%d, s%d" % (s_wooff, s_wobase))
        elif i % 4 == 0: a.i("s_add_u32 s%d, s%d, 4096" % (s_wooff, s_wooff))
        a.i("buffer_load_dwordx4 %s, v%d, s[%d:%d], s%d offen offset:%d" % (vr(slot(k)), v_wo, SWO, SWO + 3, s_wooff, (i % 4) * 1024), tag=("wo", i))
    def release(key):
        free.append(where.pop(key))
    for i in range(16): load_wq(i)
    for i in range(32): load_kv("k", i)
    pending = [("v", i) for i in range(18)] + [("wo", i) for i in range(16)] + [("v", i) for i in range(18, 32)]
    def issue_next():
        if pending and free:
            kind, i = pending.pop(0)
            if kind == "wo": load_wo(i)
            else: load_kv(kind, i)
    a.i("v_lshrrev_b32 v%d, 8, v0" % v_t0)
    a.i("v_lshlrev_b32 v%d, 16, v%d" % (v_wo, v_t0))
    a.i("v_lshl_add_u32 v%d, v%d, 14, v%d" % (v_wo, v_g, v_wo))
    a.i("v_bfe_u32 v%d, v0, 6, 2" % (v_t0 + 1))
    a.i("v_lshl_add_u32 v%d, v%d, 8, v%d" % (v_wo, v_t0 + 1, v_wo))
    a.i("v_lshl_add_u32 v%d, v%d, 4, v%d" % (v_wo, v_c, v_wo))
    while free and len(pending) > 46: issue_next()
    srd(a, SWS, 40, 41, 0x400000)
    a.i("s_mov_b32 s%d, 0xcccccccc" % s_m1); a.i("s_mov_b32 s%d, 0xcccccccc" % (s_m1 + 1))
    a.i("s_mov_b32 s%d, 0xaaaaaaaa" % s_m0); a.i("s_mov_b32 s%d, 0xaaaaaaaa" % (s_m0 + 1))
    a.i("s_mov_b32 s%d, 0x%x" % (s_log2e, LOG2E))
    a.i("s_mov_b32 s%d, 0x%x" % (s_scale, SCALE))
    a.i("v_mov_b32 v%d, 0xffff" % v_t0)
    a.i("v_mov_b32 v%d, 0xffff0000" % (v_t0 + 1))
    a.i("v_cndmask_b32 v%d, v%d, v%d, s[%d:%d]" % (v_t0, v_t0, v_t0 + 1, s_m0, s_m0 + 1))
    a.i("v_bfe_u32 v%d, v0, 1, 2" % (v_t0 + 1))
    for t in range(4):
        a.i("v_cmp_eq_u32 vcc, %d, v%d" % (t, v_t0 + 1))
        a.i("v_cndmask_b32 v%d, 0, v%d, vcc" % (v_mask + t, v_t0))
    def gemv_block(vec, keys, first, refill=True):
        def buildA(i):
            A = v_A[i % 2]
            for t in range(4):
                a.i("v_and_b32_dpp v%d, v%d, v%d row_newbcast:%d row_mask:0xf bank_mask:0xf" % (A + t, vec, v_mask + t, i))
        buildA(0)
        for i, key in enumerate(keys):
            if i + 1 < len(keys): buildA(i + 1)
            a.wait_vm(key)
            c = "0" if (first and i == 0) else vr(v_D)
            a.i("v_mfma_f32_16x16x32_bf16 %s, %s, %s, %s" % (vr(v_D), vr(v_A[i % 2]), vr(slot(where[key])), c))
            release(key)
            if refill: issue_next()
    a.wait_vm("x")
    a.i("v_lshl_or_b32 v%d, v%d, 16, v%d" % (v_x, v_x, v_x))
    gemv_block(v_x, [("wq", i) for i in range(16)], True)
    stamp(1)
    v_ldsD = v_t0 + 2
    a.i("v_lshrrev_b32 v%d, 6, v0" % v_t0)
    a.i("v_lshlrev_b32 v%d, 9, v%d" % (v_ldsD, v_t0))
    a.i("v_lshl_add_u32 v%d, v%d, 5, v%d" % (v_ldsD, v_c, v_ldsD))
    a.i("v_and_b32 v%d, 1, v%d" % (v_t0 + 1, v_g))
    a.i("v_lshl_add_u32 v%d, v%d, 4, v%d" % (v_ldsD, v_t0 + 1, v_ldsD))
    a.i("ds_write_b128 v%d, %s" % (v_ldsD, vr(v_D)))
    a.i("v_lshlrev_b32 v%d, 3, v%d" % (v_t0, v_lane))
    a.i("s_waitcnt lgkmcnt(0)")
    a.i("s_barrier")
    for w in range(8):
        a.i("ds_read_b64 v[%d:%d], v%d offset:%d" % (v_T + 2 * w, v_T + 2 * w + 1, v_t0, w * 512))
    a.i("v_lshlrev_b32 v%d, 2, v0" % (v_t0 + 1))
    a.i("v_and_b32 v%d, 0x700, v%d" % (v_t0 + 3, v_t0 + 1))
    a.i("v_lshl_add_u32 v%d, v%d, 4, v%d" % (v_t0 + 3, v_c, v_t0 + 3))
    a.i("s_waitcnt lgkmcnt(0)")
    for step in (1, 2, 4):
        for w in range(0, 8, 2 * step):
            a.i("v_add_f32 v%d, v%d, v%d" % (v_T + 2 * w, v_T + 2 * w, v_T + 2 * (w + step)))
            a.i("v_add_f32 v%d, v%d, v%d" % (v_T + 2 * w + 1, v_T + 2 * w + 1, v_T + 2 * (w + step) + 1))
    a.i("v_cvt_pk_bf16_f32 v%d, v%d, v%d" % (v_T, v_T, v_T + 1))
    a.i("ds_write_b32 v%d, v%d offset:4096" % (v_t0 + 1, v_T))
    a.i("s_waitcnt lgkmcnt(0)")
    a.i("ds_read_b128 %s, v%d offset:4096" % (vr(v_q), v_t0 + 3))
    a.i("s_waitcnt lgkmcnt(0)")
    stamp(2)
    for blk in range(2):
        for i in range(16):
            a.i("v_mov_b32 v%d, 0" % (v_T + i))
        for i in range(16):
            key = ("k", blk * 16 + i)
            a.wait_vm(key)
            for t in range(4):
                a.i("v_dot2c_f32_bf16 v%d, v%d, v%d" % (v_T + i, slot(where[key]) + t, v_q + t))
            release(key)
            issue_next()
        T = v_T
        for k in range(8):
            a.i("v_add_f32_dpp v%d, v%d, v%d row_ror:8 row_mask:0xf bank_mask:0x3" % (T + k, T + k, T + k))
        for k in range(8):
            a.i("v_add_f32_dpp v%d, v%d, v%d row_ror:8 row_mask:0xf bank_mask:0xc" % (T + k, T + k + 8, T + k + 8))
        for k in range(4):
            a.i("v_add_f32_dpp v%d, v%d, v%d row_half_mirror row_mask:0xf bank_mask:0x5" % (T + k, T + k, T + k))
        for k in range(4):
            a.i("v_add_f32_dpp v%d, v%d, v%d row_half_mirror row_mask:0xf bank_mask:0xa" % (T + k, T + k + 4, T + k + 4))
        for k in range(4):
            a.i("v_add_f32_dpp v%d, v%d, v%d quad_perm:[2,3,0,1] row_mask:0xf bank_mask:0xf" % (T + k, T + k, T + k))
        for k in range(2):
            a.i("v_cndmask_b32 v%d, v%d, v%d, s[%d:%d]" % (T + k, T + k, T + k + 2, s_m1, s_m1 + 1))
        for k in range(2):
            a.i("v_add_f32_dpp v%d, v%d, v%d quad_perm:[1,0,3,2] row_mask:0xf bank_mask:0xf" % (T + k, T + k, T + k))
        s = v_s[blk]
        a.i("v_cndmask_b32 v%d, v%d, v%d, s[%d:%d]" % (s, T, T + 1, s_m0, s_m0 + 1))
        a.i("v_cvt_pk_bf16_f32 v%d, v%d, v%d" % (s, s, s))
        a.i("v_and_b32 v%d, 0xffff0000, v%d" % (s, s))
        a.i("v_mul_f32 v%d, s%d, v%d" % (s, s_scale, s))
        a.i("v_cvt_pk_bf16_f32 v%d, v%d, v%d" % (s, s, s))
        a.i("v_and_b32 v%d, 0xffff0000, v%d" % (s, s))
    while pending: issue_next()
    stamp(3)
    m = v_t0
    def wave_red(op, r):
        for rot in (8, 4, 2, 1):
            a.i("%s_dpp v%d, v%d, v%d row_ror:%d row_mask:0xf bank_mask:0xf" % (op, r, r, r, rot))
        a.i("%s_dpp v%d, v%d, v%d row_bcast:15 row_mask:0xa bank_mask:0xf" % (op, r, r, r))
        a.i("%s_dpp v%d, v%d, v%d row_bcast:31 row_mask:0xc bank_mask:0xf" % (op, r, r, r))
    a.i("v_max_f32 v%d, v%d, v%d" % (m, v_s[0], v_s[1]))
    v_red = v_t0 + 4
    a.i("v_lshrrev_b32 v%d, 6, v0" % v_red)
    a.i("v_lshlrev_b32 v%d, 2, v%d" % (v_red, v_red))
    a.i("v_lshl_add_u32 v%d, v%d, 5, v%d" % (v_red, v_g, v_red))
    wave_red("v_max_f32", m)
    a.i("ds_write_b32 v%d, v%d offset:6144" % (v_red, m))
    a.i("v_mov_b32 v%d, 0" % (v_t0 + 1))
    a.i("s_waitcnt lgkmcnt(0)")
    a.i("s_barrier")
    a.i("ds_read_b128 %s, v%d offset:%d" % (vr(v_T), v_t0 + 1, 6144 + 96))
    a.i("ds_read_b128 %s, v%d offset:%d" % (vr(v_T + 4), v_t0 + 1, 6144 + 112))
    a.i("s_waitcnt lgkmcnt(0)")
    v_M = v_t0 + 5
    a.i("v_max3_f32 v%d, v%d, v%d, v%d" % (v_M, v_T, v_T + 1, v_T + 2))
    a.i("v_max3_f32 v%d, v%d, v%d, v%d" % (v_M, v_M, v_T + 3, v_T + 4))
    a.i("v_max3_f32 v%d, v%d, v%d, v%d" % (v_M, v_M, v_T + 5, v_T + 6))
    a.i("v_max_f32 v%d, v%d, v%d" % (v_M, v_M, v_T + 7))
    for s in v_s:
        a.i("v_sub_f32 v%d, v%d, v%d" % (s, s, v_M))
    for s in v_s:
        a.i("v_mul_f32 v%d, s%d, v%d" % (s, s_log2e, s))
    for s in v_s:
        a.i("v_exp_f32 v%d, v%d" % (s, s))
    l = v_t0
    a.i("v_add_f32 v%d, v%d, v%d" % (l, v_s[0], v_s[1]))
    for s in v_s:
        a.i("v_cvt_pk_bf16_f32 v%d, v%d, v%d" % (s, s, s))
    wave_red("v_add_f32", l)
    a.i("ds_write_b32 v%d, v%d offset:6400" % (v_red, l))
    stamp(4)
    gemv_block(v_s[0], [("v", i) for i in range(16)], True, refill=False)
    gemv_block(v_s[1], [("v", i) for i in range(16, 32)], False, refill=False)
    stamp(5)
    a.i("ds_write_b128 v%d, %s offset:8192" % (v_ldsD, vr(v_D)))
    a.i("v_lshrrev_b32 v%d, 8, v0" % v_t0)
    a.i("v_lshlrev_b32 v%d, 8, v%d" % (v_t0, v_t0))
    a.i("v_lshl_add_u32 v%d, v%d, 2, v%d" % (v_t0, v_lane, v_t0))
    v_y = v_t0 + 6
    a.i("v_bfe_u32 v%d, v0, 6, 2" % v_y)
    a.i("v_lshl_add_u32 v%d, v%d, 4, v%d" % (v_y, v_y, v_c))
    a.i("v_lshlrev_b32 v%d, 12, v%d" % (v_y, v_y))
    a.i("v_lshrrev_b32 v%d, 8, v0" % (v_t0 + 7))
    a.i("v_lshl_add_u32 v%d, v%d, 5, v%d" % (v_y, v_t0 + 7, v_y))
    a.i("v_lshl_add_u32 v%d, v%d, 4, v%d" % (v_y, v_g, v_y))
    s_grp, s_p = 14, 15
    a.i("s_lshl_b32 s%d, s%d, 1" % (s_grp, s_br))
    a.i("s_or_b32 s%d, s%d, s%d" % (s_grp, s_grp, s_b))
    a.i("s_lshl_b32 s%d, s%d, 1" % (s_p, s_h))
    a.i("s_or_b32 s%d, s%d, s%d" % (s_p, s_p, s_half))
    a.i("s_lshl_b32 s%d, s%d, 18" % (s_off, s_grp))
    a.i("s_lshl_b32 s%d, s%d, 6" % (s_tmp, s_p))
    a.i("s_add_u32 s%d, s%d, s%d" % (s_off, s_off, s_tmp))
    a.i("s_waitcnt lgkmcnt(0)")
    a.i("s_barrier")
    for w in range(8):
        a.i("ds_read_b32 v%d, v%d offset:%d" % (v_T + w, v_t0, 8192 + w * 512))
    a.i("ds_read_b128 %s, v%d offset:%d" % (vr(v_T + 8), v_t0 + 1, 6400 + 96))
    a.i("ds_read_b128 %s, v%d offset:%d" % (vr(v_T + 12), v_t0 + 1, 6400 + 112))
    a.i("s_waitcnt lgkmcnt(2)")
    for step in (1, 2, 4):
        for w in range(0, 8, 2 * step):
            a.i("v_add_f32 v%d, v%d, v%d" % (v_T + w, v_T + w, v_T + w + step))
    v_o = v_s[0]
    a.i("v_cvt_pk_bf16_f32 v%d, v%d, v%d" % (v_o, v_T, v_T))
    gemv_block(v_o, [("wo", i) for i in range(16)], True, refill=False)
    a.i("s_mov_b32 exec_hi, 0")
    a.i("buffer_store_dwordx4 %s, v%d, s[%d:%d], s%d offen" % (vr(v_D), v_y, SWS, SWS + 3, s_off), tag="y")
    a.i("s_cmp_lg_u32 s%d, 0" % s_wave)
    a.i("s_cbranch_scc1 L_end1")
    a.i("s_waitcnt lgkmcnt(0)")
    for step in (1, 2, 4):
        for w in range(0, 8, 2 * step):
            a.i("v_add_f32 v%d, v%d, v%d" % (v_T + 8 + w, v_T + 8 + w, v_T + 8 + w + step))
    a.i("v_mov_b32 v%d, v%d" % (v_T + 9, v_T + 8))
    a.i("v_mov_b32 v%d, v%d" % (v_T + 8, v_M))
    a.i("s_lshl_b32 s%d, s%d, 9" % (s_off, s_grp))
    a.i("s_lshl_b32 s%d, s%d, 3" % (s_tmp, s_p))
    a.i("s_add_u32 s%d, s%d, s%d" % (s_off, s_off, s_tmp))
    a.i("s_add_u32 s%d, s%d, 0x%x" % (s_off, s_off, WS_ML))
    a.i("s_mov_b32 exec_lo, 1")
    a.i("buffer_store_dwordx2 v[%d:%d], v%d, s[%d:%d], s%d offen" % (v_T + 8, v_T + 9, v_t0 + 1, SWS, SWS + 3, s_off), tag="ml")
    if ts:
        stamp(6)
        a.i("s_waitcnt lgkmcnt(0)")
        a.i("s_lshl_b32 s%d, s2, 6" % s_off)
        a.i("s_add_u32 s%d, s%d, 0x%x" % (s_off, s_off, WS_TS))
        for k in range(7):
            a.i("v_mov_b32 v%d, s%d" % (v_T + k, s_ts + 2 * k))
        a.i("v_mov_b32 v%d, 0" % (v_T + 7))
        a.i("buffer_store_dwordx4 %s, v%d, s[%d:%d], s%d offen" % (vr(v_T), v_t0 + 1, SWS, SWS + 3, s_off), tag="ts")
        a.i("buffer_store_dwordx4 %s, v%d, s[%d:%d], s%d offen offset:16" % (vr(v_T + 4), v_t0 + 1, SWS, SWS + 3, s_off), tag="ts")
    a.label("L_end1")
    a.i("s_endpgm")
    k1 = a.text() + kd(kname, 256, 102)

    a = Asm()
    k2name = "combine_kernel"
    a.raw(".globl %s\n.p2align 8\n.type %s,@function\n%s:" % (k2name, k2name, k2name))
    a.i("s_cmp_ge_u32 s2, 256")
    a.i("s_cbranch_scc1 L_end2")
    a.i("s_load_dwordx2 s[4:5], s[0:1], 80")
    a.i("s_load_dwordx2 s[6:7], s[0:1], 96")
    a.i("s_lshl_b32 s16, s2, 12")
    a.i("s_lshr_b32 s17, s2, 6")
    a.i("s_lshl_b32 s18, s17, 9")
    a.i("s_add_u32 s18, s18, 0x%x" % WS_ML)
    a.i("v_lshlrev_b32 v1, 4, v0")
    a.i("v_lshrrev_b32 v2, 3, v0")
    a.i("v_lshlrev_b32 v2, 4, v2")
    a.i("s_and_b32 s19, s17, 1")
    a.i("s_lshl_b32 s19, s19, 11")
    a.i("s_lshr_b32 s20, s17, 1")
    a.i("s_lshl_b32 s20, s20, 10")
    a.i("s_add_u32 s19, s19, s20")
    a.i("s_and_b32 s20, s2, 63")
    a.i("s_lshl_b32 s20, s20, 4")
    a.i("s_add_u32 s19, s19, s20")
    a.i("s_mov_b32 s21, 0x%x" % LOG2E)
    a.i("s_mov_b32 s22, 0xf0f0f0f0")
    a.i("s_mov_b32 s23, 0xf0f0f0f0")
    a.i("s_waitcnt lgkmcnt(0)")
    srd(a, 8, 6, 7, 0x400000)
    for k in range(4):
        a.i("buffer_load_dwordx4 %s, v2, s[8:11], s18 offen offset:%d" % (vr(24 + 4 * k), k * 128), tag=("ml", k))
    for k in range(4):
        a.i("buffer_load_dwordx4 %s, v1, s[8:11], s16 offen offset:%d" % (vr(8 + 4 * k), k * 1024), tag=("y", k))
    srd(a, 12, 4, 5, 4096)
    a.i("v_bfe_u32 v3, v0, 4, 1")
    a.i("v_bfe_u32 v4, v0, 5, 1")
    a.i("v_lshl_add_u32 v3, v3, 1, v4")
    a.i("v_and_b32 v4, 1, v0")
    a.i("v_lshl_add_u32 v3, v4, 2, v3")
    a.i("v_lshlrev_b32 v3, 1, v3")
    a.wait_vm(("ml", 3))
    for k in range(4):
        b = 24 + 4 * k
        a.i("v_max_f32 v%d, v%d, v%d" % (40 + k, b, b + 2))
    for k in range(4):
        b = 24 + 4 * k
        a.i("v_sub_f32 v%d, v%d, v%d" % (b, b, 40 + k))
        a.i("v_sub_f32 v%d, v%d, v%d" % (b + 2, b + 2, 40 + k))
    for k in range(4):
        b = 24 + 4 * k
        a.i("v_mul_f32 v%d, s21, v%d" % (b, b))
        a.i("v_mul_f32 v%d, s21, v%d" % (b + 2, b + 2))
    for k in range(4):
        b = 24 + 4 * k
        a.i("v_exp_f32 v%d, v%d" % (b, b))
        a.i("v_exp_f32 v%d, v%d" % (b + 2, b + 2))
    for k in range(4):
        b = 24 + 4 * k
        a.i("v_mul_f32 v%d, v%d, v%d" % (b + 1, b, b + 1))
        a.i("v_fmac_f32 v%d, v%d, v%d" % (b + 1, b + 2, b + 3))
    for k in range(4):
        b = 24 + 4 * k
        a.i("v_rcp_f32 v%d, v%d" % (b + 1, b + 1))
        a.i("v_cndmask_b32 v%d, v%d, v%d, s[22:23]" % (b, b, b + 2))
    for k in range(4):
        b = 24 + 4 * k
        a.i("v_mul_f32 v%d, v%d, v%d" % (40 + k, b, b + 1))
    for k in range(4):
        a.wait_vm(("y", k))
        for t in range(4):
            if k == 0: a.i("v_mul_f32 v%d, v40, v%d" % (44 + t, 8 + t))
            else: a.i("v_fmac_f32 v%d, v%d, v%d" % (44 + t, 40 + k, 8 + 4 * k + t))
    a.i("v_permlane32_swap_b32 v44, v45")
    a.i("v_permlane32_swap_b32 v46, v47")
    a.i("v_add_f32 v44, v44, v45")
    a.i("v_add_f32 v46, v46, v47")
    a.i("v_permlane16_swap_b32 v44, v46")
    a.i("v_add_f32 v44, v44, v46")
    a.i("v_add_f32_dpp v44, v44, v44 quad_perm:[2,3,0,1] row_mask:0xf bank_mask:0xf")
    a.i("v_add_f32_dpp v44, v44, v44 row_ror:4 row_mask:0xf bank_mask:0xf")
    a.i("v_add_f32_dpp v44, v44, v44 row_ror:8 row_mask:0xf bank_mask:0xf")
    a.i("v_cvt_pk_bf16_f32 v44, v44, v44")
    a.i("s_mov_b32 exec_lo, 0x00030003")
    a.i("s_mov_b32 exec_hi, 0x00030003")
    a.i("buffer_store_short v44, v3, s[12:15], s19 offen", tag="o")
    a.label("L_end2")
    a.i("s_endpgm")
    k2 = a.text() + kd(k2name, 48, 32)
    head = HDR + "; @launch kernel=%s grid=(256,1,1) block=(512,1,1) lds=16384\n" % kname
    head += "; @launch kernel=%s grid=(256,1,1) block=(64,1,1) lds=0\n" % k2name
    head += '.amdgcn_target "amdgcn-amd-amdhsa--gfx950"\n.text\n'
    return head + k1 + k2

if __name__ == "__main__":
    out = sys.argv[1]
    kw = {}
    for arg in sys.argv[2:]:
        k, v = arg.split("=")
        kw[k] = int(v)
    open(out, "w").write(gen(**kw))
```

```python
import sys
from asmlib import Asm

NAME = "concat_heads__sliding_block_cached__sliding_block_cached__decode"
HDR = open("cdna_kernels/%s.s.ref" % NAME).read().split("; Override launch")[0]

LOG2E = 0x3fb8aa3b
SCALE = 0x3db504f3
WS_ML = 1 << 20
WS_TS = 2 << 20

def srd(a, d, lo, hi, size):
    a.i("s_mov_b32 s%d, s%d" % (d, lo))
    a.i("s_mov_b32 s%d, s%d" % (d + 1, hi))
    a.i("s_mov_b32 s%d, 0x%x" % (d + 2, size))
    a.i("s_mov_b32 s%d, 0x20000" % (d + 3))

def vr(base, n=4):
    return "v[%d:%d]" % (base, base + n - 1)

def kd(name, vgpr, sgpr):
    acc = (vgpr + 3) // 4 * 4
    return """.section .rodata,"a"
.p2align 6
.amdhsa_kernel %s
  .amdhsa_next_free_vgpr %d
  .amdhsa_next_free_sgpr %d
  .amdhsa_accum_offset %d
  .amdhsa_group_segment_fixed_size 0
  .amdhsa_kernarg_size 104
  .amdhsa_user_sgpr_count 2
  .amdhsa_user_sgpr_kernarg_segment_ptr 1
  .amdhsa_system_sgpr_workgroup_id_x 1
.end_amdhsa_kernel
.text
""" % (name, vgpr, sgpr, acc)

def gen(nt=True, interleave=False, ts=False, newmap=1, rot=1, wqrow=1, kfirst=32, wnt=0):
    NW = 8
    a = Asm()
    kname = NAME + "_kernel"
    a.raw(".globl %s\n.p2align 8\n.type %s,@function\n%s:" % (kname, kname, kname))
    SK, SV, SWQ, SWO, SX, SWS = 44, 48, 52, 56, 60, 64
    s_br, s_h, s_b, s_half, s_wave = 4, 5, 6, 7, 8
    s_kvbase, s_off, s_wqbase, s_wobase, s_tmp = 9, 10, 11, 12, 13
    s_m1, s_m0 = 70, 72
    s_log2e, s_scale = 74, 75
    s_voff, s_wooff = 76, 77
    s_koff = 3
    s_ts = 80
    def stamp(idx):
        if not ts: return
        a.i("s_memrealtime s[%d:%d]" % (s_ts + 2 * idx, s_ts + 2 * idx + 1))
    a.i("s_cmp_ge_u32 s2, 256")
    a.i("s_cbranch_scc1 L_end1")
    a.i("s_load_dwordx16 s[16:31], s[0:1], 0")
    a.i("s_load_dwordx8 s[32:39], s[0:1], 64")
    a.i("s_load_dwordx2 s[40:41], s[0:1], 96")
    stamp(0)
    if newmap:
        a.i("s_bfe_u32 s%d, s2, 0x10002" % s_br)
        a.i("s_and_b32 s%d, s2, 3" % s_tmp)
        a.i("s_lshl_b32 s%d, s%d, 3" % (s_tmp, s_tmp))
        a.i("s_lshr_b32 s%d, s2, 5" % s_h)
        a.i("s_or_b32 s%d, s%d, s%d" % (s_h, s_h, s_tmp))
    else:
        a.i("s_lshr_b32 s%d, s2, 7" % s_br)
        a.i("s_lshr_b32 s%d, s2, 5" % s_tmp)
        a.i("s_and_b32 s%d, s%d, 3" % (s_tmp, s_tmp))
        a.i("s_lshl_b32 s%d, s%d, 3" % (s_tmp, s_tmp))
        a.i("s_and_b32 s%d, s2, 7" % s_h)
        a.i("s_or_b32 s%d, s%d, s%d" % (s_h, s_h, s_tmp))
    a.i("s_bfe_u32 s%d, s2, 0x10004" % s_b)
    a.i("s_bfe_u32 s%d, s2, 0x10003" % s_half)
    a.i("s_lshl_b32 s%d, s%d, 26" % (s_kvbase, s_b))
    a.i("s_lshl_b32 s%d, s%d, 21" % (s_tmp, s_h))
    a.i("s_add_u32 s%d, s%d, s%d" % (s_kvbase, s_kvbase, s_tmp))
    a.i("s_lshl_b32 s%d, s%d, 18" % (s_tmp, s_half))
    a.i("s_add_u32 s%d, s%d, s%d" % (s_kvbase, s_kvbase, s_tmp))
    a.i("s_add_u32 s%d, s%d, 0x%x" % (s_kvbase, s_kvbase, 6144 * 256))
    a.i("s_lshl_b32 s%d, s%d, 8" % (s_wqbase, s_h))
    a.i("s_lshl_b32 s%d, s%d, 17" % (s_wobase, s_h))
    v_lane, v_kv, v_wq, v_wo, v_x = 1, 2, 3, 4, 5
    v_g, v_c = 6, 7
    v_mask = 8
    v_A = [12, 16]
    v_D = 20
    v_q = 24
    v_s = [28, 29]
    v_t0 = 30
    v_T = 40
    SLOT0 = 56
    NSLOT = (256 - SLOT0) // 4
    free = list(range(NSLOT))
    slot = lambda k: SLOT0 + 4 * k
    a.i("v_and_b32 v%d, 63, v0" % v_lane)
    a.i("v_lshrrev_b32 v%d, 6, v0" % v_t0)
    a.i("v_readfirstlane_b32 s%d, v%d" % (s_wave, v_t0))
    a.i("v_lshrrev_b32 v%d, 4, v%d" % (v_g, v_lane))
    a.i("v_and_b32 v%d, 15, v%d" % (v_c, v_lane))
    a.i("s_lshl_b32 s%d, s%d, 10" % (s_off, s_b))
    if wqrow:
        a.i("v_and_b32 v%d, 0x1c0, v0" % v_wq)
        a.i("v_add_u32 v%d, v%d, v%d" % (v_wq, v_wq, v_g))
        a.i("v_lshl_add_u32 v%d, v%d, 2, v%d" % (v_x, v_c, v_wq))
        a.i("v_lshlrev_b32 v%d, 1, v%d" % (v_x, v_x))
        a.i("v_lshlrev_b32 v%d, 13, v%d" % (v_wq, v_wq))
        a.i("v_lshl_add_u32 v%d, v%d, 4, v%d" % (v_wq, v_c, v_wq))
    else:
        a.i("v_lshlrev_b32 v%d, 1, v0" % v_x)
        a.i("v_and_b32 v%d, 0x1f0, v0" % v_wq)
        a.i("v_lshlrev_b32 v%d, 13, v%d" % (v_wq, v_wq))
        a.i("v_lshl_add_u32 v%d, v%d, 4, v%d" % (v_wq, v_c, v_wq))
    s_rotk, s_rotv = 78, 79
    a.i("s_lshr_b32 s%d, s2, 3" % s_rotk)
    a.i("s_add_u32 s%d, s%d, s%d" % (s_rotk, s_rotk, s_wave))
    a.i("s_lshl_b32 s%d, s%d, 12" % (s_rotk, s_rotk))
    if not rot: a.i("s_mov_b32 s%d, 0" % s_rotk)
    a.i("s_mov_b32 s%d, s%d" % (s_rotv, s_rotk))
    if interleave:
        a.i("v_lshlrev_b32 v%d, 4, v0" % v_kv)
    else:
        a.i("v_lshlrev_b32 v%d, 15, v%d" % (v_kv, v_t0))
        a.i("v_lshl_add_u32 v%d, v%d, 4, v%d" % (v_kv, v_lane, v_kv))
    a.i("s_waitcnt lgkmcnt(0)")
    a.i("s_cmp_eq_u32 s%d, 0" % s_br)
    a.i("s_cselect_b32 s%d, s16, s26" % SX)
    a.i("s_cselect_b32 s%d, s17, s27" % (SX + 1))
    a.i("s_mov_b32 s%d, 2048" % (SX + 2))
    a.i("s_mov_b32 s%d, 0x20000" % (SX + 3))
    a.i("s_cselect_b32 s%d, s22, s32" % SWQ)
    a.i("s_cselect_b32 s%d, s23, s33" % (SWQ + 1))
    a.i("s_mov_b32 s%d, 0x400000" % (SWQ + 2))
    a.i("s_mov_b32 s%d, 0x20000" % (SWQ + 3))
    a.i("buffer_load_ushort v%d, v%d, s[%d:%d], s%d offen" % (v_x, v_x, SX, SX + 3, s_off), tag="x")
    a.i("s_cselect_b32 s%d, s18, s28" % SK)
    a.i("s_cselect_b32 s%d, s19, s29" % (SK + 1))
    a.i("s_mov_b32 s%d, 0x8000000" % (SK + 2))
    a.i("s_mov_b32 s%d, 0x20000" % (SK + 3))
    a.i("s_cselect_b32 s%d, s20, s30" % SV)
    a.i("s_cselect_b32 s%d, s21, s31" % (SV + 1))
    a.i("s_mov_b32 s%d, 0x8000000" % (SV + 2))
    a.i("s_mov_b32 s%d, 0x20000" % (SV + 3))
    a.i("s_cselect_b32 s%d, s24, s34" % SWO)
    a.i("s_cselect_b32 s%d, s25, s35" % (SWO + 1))
    a.i("s_mov_b32 s%d, 0x400000" % (SWO + 2))
    a.i("s_mov_b32 s%d, 0x20000" % (SWO + 3))
    where = {}
    def load_wq(i):
        k = free.pop(0); where[("wq", i)] = k
        if i == 0:
            a.i("s_mov_b32 s%d, s%d" % (s_off, s_wqbase))
        else:
            a.i("s_add_u32 s%d, s%d, %d" % (s_off, s_off, 32768 if wqrow else 8192))
        a.i("buffer_load_dwordx4 %s, v%d, s[%d:%d], s%d offen%s" % (vr(slot(k)), v_wq, SWQ, SWQ + 3, s_off, " nt" if wnt & 1 else ""), tag=("wq", i))
    NTS = " nt" if nt else ""
    def load_kv(kind, i):
        k = free.pop(0); where[(kind, i)] = k
        srdr = SK if kind == "k" else SV
        so = s_koff if kind == "k" else s_voff
        if interleave:
            if i == 0: a.i("s_mov_b32 s%d, s%d" % (so, s_kvbase))
            else: a.i("s_add_u32 s%d, s%d, 8192" % (so, so))
            off = 0
        else:
            sr = s_rotk if kind == "k" else s_rotv
            if i % 4 == 0:
                a.i("s_and_b32 s%d, s%d, 0x7fff" % (so, sr))
                a.i("s_add_u32 s%d, s%d, s%d" % (so, so, s_kvbase))
                a.i("s_add_u32 s%d, s%d, 4096" % (sr, sr))
            off = (i % 4) * 1024
        a.i("buffer_load_dwordx4 %s, v%d, s[%d:%d], s%d offen offset:%d%s" % (vr(slot(k)), v_kv, srdr, srdr + 3, so, off, NTS), tag=(kind, i))
    def load_wo(i):
        k = free.pop(0); where[("wo", i)] = k
        if i == 0: a.i("s_mov_b32 s%d, s%d" % (s_wooff, s_wobase))
        elif i % 4 == 0: a.i("s_add_u32 s%d, s%d, 4096" % (s_wooff, s_wooff))
        a.i("buffer_load_dwordx4 %s, v%d, s[%d:%d], s%d offen offset:%d%s" % (vr(slot(k)), v_wo, SWO, SWO + 3, s_wooff, (i % 4) * 1024, " nt" if wnt & 2 else ""), tag=("wo", i))
    def release(key):
        free.append(where.pop(key))
    for i in range(16): load_wq(i)
    for i in range(kfirst): load_kv("k", i)
    pending = [("k", i) for i in range(kfirst, 32)] + [("v", i) for i in range(18)] + [("wo", i) for i in range(16)] + [("v", i) for i in range(18, 32)]
    def issue_next():
        if pending and free:
            kind, i = pending.pop(0)
            if kind == "wo": load_wo(i)
            else: load_kv(kind, i)
    a.i("v_lshrrev_b32 v%d, 8, v0" % v_t0)
    a.i("v_lshlrev_b32 v%d, 16, v%d" % (v_wo, v_t0))
    a.i("v_lshl_add_u32 v%d, v%d, 14, v%d" % (v_wo, v_g, v_wo))
    a.i("v_bfe_u32 v%d, v0, 6, 2" % (v_t0 + 1))
    a.i("v_lshl_add_u32 v%d, v%d, 8, v%d" % (v_wo, v_t0 + 1, v_wo))
    a.i("v_lshl_add_u32 v%d, v%d, 4, v%d" % (v_wo, v_c, v_wo))
    while kfirst == 32 and free and len(pending) > 46: issue_next()
    srd(a, SWS, 40, 41, 0x400000)
    a.i("s_mov_b32 s%d, 0xcccccccc" % s_m1); a.i("s_mov_b32 s%d, 0xcccccccc" % (s_m1 + 1))
    a.i("s_mov_b32 s%d, 0xaaaaaaaa" % s_m0); a.i("s_mov_b32 s%d, 0xaaaaaaaa" % (s_m0 + 1))
    a.i("s_mov_b32 s%d, 0x%x" % (s_log2e, LOG2E))
    a.i("s_mov_b32 s%d, 0x%x" % (s_scale, SCALE))
    a.i("v_mov_b32 v%d, 0xffff" % v_t0)
    a.i("v_mov_b32 v%d, 0xffff0000" % (v_t0 + 1))
    a.i("v_cndmask_b32 v%d, v%d, v%d, s[%d:%d]" % (v_t0, v_t0, v_t0 + 1, s_m0, s_m0 + 1))
    a.i("v_bfe_u32 v%d, v0, 1, 2" % (v_t0 + 1))
    for t in range(4):
        a.i("v_cmp_eq_u32 vcc, %d, v%d" % (t, v_t0 + 1))
        a.i("v_cndmask_b32 v%d, 0, v%d, vcc" % (v_mask + t, v_t0))
    def gemv_block(vec, keys, first, refill=True):
        def buildA(i):
            A = v_A[i % 2]
            for t in range(4):
                a.i("v_and_b32_dpp v%d, v%d, v%d row_newbcast:%d row_mask:0xf bank_mask:0xf" % (A + t, vec, v_mask + t, i))
        buildA(0)
        for i, key in enumerate(keys):
            if i + 1 < len(keys): buildA(i + 1)
            a.wait_vm(key)
            c = "0" if (first and i == 0) else vr(v_D)
            a.i("v_mfma_f32_16x16x32_bf16 %s, %s, %s, %s" % (vr(v_D), vr(v_A[i % 2]), vr(slot(where[key])), c))
            release(key)
            if refill: issue_next()
    a.wait_vm("x")
    a.i("v_lshl_or_b32 v%d, v%d, 16, v%d" % (v_x, v_x, v_x))
    gemv_block(v_x, [("wq", i) for i in range(16)], True)
    stamp(1)
    v_ldsD = v_t0 + 2
    a.i("v_lshrrev_b32 v%d, 6, v0" % v_t0)
    a.i("v_lshlrev_b32 v%d, 9, v%d" % (v_ldsD, v_t0))
    a.i("v_lshl_add_u32 v%d, v%d, 5, v%d" % (v_ldsD, v_c, v_ldsD))
    a.i("v_and_b32 v%d, 1, v%d" % (v_t0 + 1, v_g))
    a.i("v_lshl_add_u32 v%d, v%d, 4, v%d" % (v_ldsD, v_t0 + 1, v_ldsD))
    a.i("ds_write_b128 v%d, %s" % (v_ldsD, vr(v_D)))
    a.i("v_lshlrev_b32 v%d, 3, v%d" % (v_t0, v_lane))
    a.i("s_waitcnt lgkmcnt(0)")
    a.i("s_barrier")
    for w in range(8):
        a.i("ds_read_b64 v[%d:%d], v%d offset:%d" % (v_T + 2 * w, v_T + 2 * w + 1, v_t0, w * 512))
    a.i("v_lshlrev_b32 v%d, 2, v0" % (v_t0 + 1))
    a.i("v_and_b32 v%d, 0x700, v%d" % (v_t0 + 3, v_t0 + 1))
    a.i("v_lshl_add_u32 v%d, v%d, 4, v%d" % (v_t0 + 3, v_c, v_t0 + 3))
    a.i("s_waitcnt lgkmcnt(0)")
    for step in (1, 2, 4):
        for w in range(0, 8, 2 * step):
            a.i("v_add_f32 v%d, v%d, v%d" % (v_T + 2 * w, v_T + 2 * w, v_T + 2 * (w + step)))
            a.i("v_add_f32 v%d, v%d, v%d" % (v_T + 2 * w + 1, v_T + 2 * w + 1, v_T + 2 * (w + step) + 1))
    a.i("v_cvt_pk_bf16_f32 v%d, v%d, v%d" % (v_T, v_T, v_T + 1))
    a.i("ds_write_b32 v%d, v%d offset:4096" % (v_t0 + 1, v_T))
    a.i("s_waitcnt lgkmcnt(0)")
    a.i("ds_read_b128 %s, v%d offset:4096" % (vr(v_q), v_t0 + 3))
    a.i("s_waitcnt lgkmcnt(0)")
    stamp(2)
    for blk in range(2):
        for i in range(16):
            a.i("v_mov_b32 v%d, 0" % (v_T + i))
        for i in range(16):
            key = ("k", blk * 16 + i)
            a.wait_vm(key)
            for t in range(4):
                a.i("v_dot2c_f32_bf16 v%d, v%d, v%d" % (v_T + i, slot(where[key]) + t, v_q + t))
            release(key)
            issue_next()
            if kfirst < 32: issue_next()
        T = v_T
        for k in range(8):
            a.i("v_add_f32_dpp v%d, v%d, v%d row_ror:8 row_mask:0xf bank_mask:0x3" % (T + k, T + k, T + k))
        for k in range(8):
            a.i("v_add_f32_dpp v%d, v%d, v%d row_ror:8 row_mask:0xf bank_mask:0xc" % (T + k, T + k + 8, T + k + 8))
        for k in range(4):
            a.i("v_add_f32_dpp v%d, v%d, v%d row_half_mirror row_mask:0xf bank_mask:0x5" % (T + k, T + k, T + k))
        for k in range(4):
            a.i("v_add_f32_dpp v%d, v%d, v%d row_half_mirror row_mask:0xf bank_mask:0xa" % (T + k, T + k + 4, T + k + 4))
        for k in range(4):
            a.i("v_add_f32_dpp v%d, v%d, v%d quad_perm:[2,3,0,1] row_mask:0xf bank_mask:0xf" % (T + k, T + k, T + k))
        for k in range(2):
            a.i("v_cndmask_b32 v%d, v%d, v%d, s[%d:%d]" % (T + k, T + k, T + k + 2, s_m1, s_m1 + 1))
        for k in range(2):
            a.i("v_add_f32_dpp v%d, v%d, v%d quad_perm:[1,0,3,2] row_mask:0xf bank_mask:0xf" % (T + k, T + k, T + k))
        s = v_s[blk]
        a.i("v_cndmask_b32 v%d, v%d, v%d, s[%d:%d]" % (s, T, T + 1, s_m0, s_m0 + 1))
        a.i("v_cvt_pk_bf16_f32 v%d, v%d, v%d" % (s, s, s))
        a.i("v_and_b32 v%d, 0xffff0000, v%d" % (s, s))
        a.i("v_mul_f32 v%d, s%d, v%d" % (s, s_scale, s))
        a.i("v_cvt_pk_bf16_f32 v%d, v%d, v%d" % (s, s, s))
        a.i("v_and_b32 v%d, 0xffff0000, v%d" % (s, s))
    while pending: issue_next()
    stamp(3)
    m = v_t0
    def wave_red(op, r):
        for rot in (8, 4, 2, 1):
            a.i("%s_dpp v%d, v%d, v%d row_ror:%d row_mask:0xf bank_mask:0xf" % (op, r, r, r, rot))
        a.i("%s_dpp v%d, v%d, v%d row_bcast:15 row_mask:0xa bank_mask:0xf" % (op, r, r, r))
        a.i("%s_dpp v%d, v%d, v%d row_bcast:31 row_mask:0xc bank_mask:0xf" % (op, r, r, r))
    a.i("v_max_f32 v%d, v%d, v%d" % (m, v_s[0], v_s[1]))
    v_red = v_t0 + 4
    a.i("v_lshrrev_b32 v%d, 6, v0" % v_red)
    a.i("v_lshlrev_b32 v%d, 2, v%d" % (v_red, v_red))
    a.i("v_lshl_add_u32 v%d, v%d, 5, v%d" % (v_red, v_g, v_red))
    wave_red("v_max_f32", m)
    a.i("ds_write_b32 v%d, v%d offset:6144" % (v_red, m))
    a.i("v_mov_b32 v%d, 0" % (v_t0 + 1))
    a.i("s_waitcnt lgkmcnt(0)")
    a.i("s_barrier")
    a.i("ds_read_b128 %s, v%d offset:%d" % (vr(v_T), v_t0 + 1, 6144 + 96))
    a.i("ds_read_b128 %s, v%d offset:%d" % (vr(v_T + 4), v_t0 + 1, 6144 + 112))
    a.i("s_waitcnt lgkmcnt(0)")
    v_M = v_t0 + 5
    a.i("v_max3_f32 v%d, v%d, v%d, v%d" % (v_M, v_T, v_T + 1, v_T + 2))
    a.i("v_max3_f32 v%d, v%d, v%d, v%d" % (v_M, v_M, v_T + 3, v_T + 4))
    a.i("v_max3_f32 v%d, v%d, v%d, v%d" % (v_M, v_M, v_T + 5, v_T + 6))
    a.i("v_max_f32 v%d, v%d, v%d" % (v_M, v_M, v_T + 7))
    for s in v_s:
        a.i("v_sub_f32 v%d, v%d, v%d" % (s, s, v_M))
    for s in v_s:
        a.i("v_mul_f32 v%d, s%d, v%d" % (s, s_log2e, s))
    for s in v_s:
        a.i("v_exp_f32 v%d, v%d" % (s, s))
    l = v_t0
    a.i("v_add_f32 v%d, v%d, v%d" % (l, v_s[0], v_s[1]))
    for s in v_s:
        a.i("v_cvt_pk_bf16_f32 v%d, v%d, v%d" % (s, s, s))
    wave_red("v_add_f32", l)
    a.i("ds_write_b32 v%d, v%d offset:6400" % (v_red, l))
    stamp(4)
    gemv_block(v_s[0], [("v", i) for i in range(16)], True, refill=False)
    gemv_block(v_s[1], [("v", i) for i in range(16, 32)], False, refill=False)
    stamp(5)
    a.i("ds_write_b128 v%d, %s offset:8192" % (v_ldsD, vr(v_D)))
    a.i("v_lshrrev_b32 v%d, 8, v0" % v_t0)
    a.i("v_lshlrev_b32 v%d, 8, v%d" % (v_t0, v_t0))
    a.i("v_lshl_add_u32 v%d, v%d, 2, v%d" % (v_t0, v_lane, v_t0))
    v_y = v_t0 + 6
    a.i("v_bfe_u32 v%d, v0, 6, 2" % v_y)
    a.i("v_lshl_add_u32 v%d, v%d, 4, v%d" % (v_y, v_y, v_c))
    a.i("v_lshlrev_b32 v%d, 12, v%d" % (v_y, v_y))
    a.i("v_lshrrev_b32 v%d, 8, v0" % (v_t0 + 7))
    a.i("v_lshl_add_u32 v%d, v%d, 5, v%d" % (v_y, v_t0 + 7, v_y))
    a.i("v_lshl_add_u32 v%d, v%d, 4, v%d" % (v_y, v_g, v_y))
    s_grp, s_p = 14, 15
    a.i("s_lshl_b32 s%d, s%d, 1" % (s_grp, s_br))
    a.i("s_or_b32 s%d, s%d, s%d" % (s_grp, s_grp, s_b))
    a.i("s_lshl_b32 s%d, s%d, 1" % (s_p, s_h))
    a.i("s_or_b32 s%d, s%d, s%d" % (s_p, s_p, s_half))
    a.i("s_lshl_b32 s%d, s%d, 18" % (s_off, s_grp))
    a.i("s_lshl_b32 s%d, s%d, 6" % (s_tmp, s_p))
    a.i("s_add_u32 s%d, s%d, s%d" % (s_off, s_off, s_tmp))
    a.i("s_waitcnt lgkmcnt(0)")
    a.i("s_barrier")
    for w in range(8):
        a.i("ds_read_b32 v%d, v%d offset:%d" % (v_T + w, v_t0, 8192 + w * 512))
    a.i("ds_read_b128 %s, v%d offset:%d" % (vr(v_T + 8), v_t0 + 1, 6400 + 96))
    a.i("ds_read_b128 %s, v%d offset:%d" % (vr(v_T + 12), v_t0 + 1, 6400 + 112))
    a.i("s_waitcnt lgkmcnt(2)")
    for step in (1, 2, 4):
        for w in range(0, 8, 2 * step):
            a.i("v_add_f32 v%d, v%d, v%d" % (v_T + w, v_T + w, v_T + w + step))
    v_o = v_s[0]
    a.i("v_cvt_pk_bf16_f32 v%d, v%d, v%d" % (v_o, v_T, v_T))
    gemv_block(v_o, [("wo", i) for i in range(16)], True, refill=False)
    a.i("s_mov_b32 exec_hi, 0")
    a.i("buffer_store_dwordx4 %s, v%d, s[%d:%d], s%d offen" % (vr(v_D), v_y, SWS, SWS + 3, s_off), tag="y")
    a.i("s_cmp_lg_u32 s%d, 0" % s_wave)
    a.i("s_cbranch_scc1 L_end1")
    a.i("s_waitcnt lgkmcnt(0)")
    for step in (1, 2, 4):
        for w in range(0, 8, 2 * step):
            a.i("v_add_f32 v%d, v%d, v%d" % (v_T + 8 + w, v_T + 8 + w, v_T + 8 + w + step))
    a.i("v_mov_b32 v%d, v%d" % (v_T + 9, v_T + 8))
    a.i("v_mov_b32 v%d, v%d" % (v_T + 8, v_M))
    a.i("s_lshl_b32 s%d, s%d, 9" % (s_off, s_grp))
    a.i("s_lshl_b32 s%d, s%d, 3" % (s_tmp, s_p))
    a.i("s_add_u32 s%d, s%d, s%d" % (s_off, s_off, s_tmp))
    a.i("s_add_u32 s%d, s%d, 0x%x" % (s_off, s_off, WS_ML))
    a.i("s_mov_b32 exec_lo, 1")
    a.i("buffer_store_dwordx2 v[%d:%d], v%d, s[%d:%d], s%d offen" % (v_T + 8, v_T + 9, v_t0 + 1, SWS, SWS + 3, s_off), tag="ml")
    if ts:
        stamp(6)
        a.i("s_waitcnt lgkmcnt(0)")
        a.i("s_lshl_b32 s%d, s2, 6" % s_off)
        a.i("s_add_u32 s%d, s%d, 0x%x" % (s_off, s_off, WS_TS))
        for k in range(7):
            a.i("v_mov_b32 v%d, s%d" % (v_T + k, s_ts + 2 * k))
        a.i("v_mov_b32 v%d, 0" % (v_T + 7))
        a.i("buffer_store_dwordx4 %s, v%d, s[%d:%d], s%d offen" % (vr(v_T), v_t0 + 1, SWS, SWS + 3, s_off), tag="ts")
        a.i("buffer_store_dwordx4 %s, v%d, s[%d:%d], s%d offen offset:16" % (vr(v_T + 4), v_t0 + 1, SWS, SWS + 3, s_off), tag="ts")
    a.label("L_end1")
    a.i("s_endpgm")
    k1 = a.text() + kd(kname, 256, 102)

    a = Asm()
    k2name = "combine_kernel"
    a.raw(".globl %s\n.p2align 8\n.type %s,@function\n%s:" % (k2name, k2name, k2name))
    a.i("s_cmp_ge_u32 s2, 256")
    a.i("s_cbranch_scc1 L_end2")
    a.i("s_load_dwordx2 s[4:5], s[0:1], 80")
    a.i("s_load_dwordx2 s[6:7], s[0:1], 96")
    a.i("s_lshl_b32 s16, s2, 12")
    a.i("s_lshr_b32 s17, s2, 6")
    a.i("s_lshl_b32 s18, s17, 9")
    a.i("s_add_u32 s18, s18, 0x%x" % WS_ML)
    a.i("v_lshlrev_b32 v1, 4, v0")
    a.i("v_lshrrev_b32 v2, 3, v0")
    a.i("v_lshlrev_b32 v2, 4, v2")
    a.i("s_and_b32 s19, s17, 1")
    a.i("s_lshl_b32 s19, s19, 11")
    a.i("s_lshr_b32 s20, s17, 1")
    a.i("s_lshl_b32 s20, s20, 10")
    a.i("s_add_u32 s19, s19, s20")
    a.i("s_and_b32 s20, s2, 63")
    a.i("s_lshl_b32 s20, s20, 4")
    a.i("s_add_u32 s19, s19, s20")
    a.i("s_mov_b32 s21, 0x%x" % LOG2E)
    a.i("s_mov_b32 s22, 0xf0f0f0f0")
    a.i("s_mov_b32 s23, 0xf0f0f0f0")
    a.i("s_waitcnt lgkmcnt(0)")
    srd(a, 8, 6, 7, 0x400000)
    for k in range(4):
        a.i("buffer_load_dwordx4 %s, v2, s[8:11], s18 offen offset:%d" % (vr(24 + 4 * k), k * 128), tag=("ml", k))
    for k in range(4):
        a.i("buffer_load_dwordx4 %s, v1, s[8:11], s16 offen offset:%d" % (vr(8 + 4 * k), k * 1024), tag=("y", k))
    srd(a, 12, 4, 5, 4096)
    a.i("v_bfe_u32 v3, v0, 4, 1")
    a.i("v_bfe_u32 v4, v0, 5, 1")
    a.i("v_lshl_add_u32 v3, v3, 1, v4")
    a.i("v_and_b32 v4, 1, v0")
    a.i("v_lshl_add_u32 v3, v4, 2, v3")
    a.i("v_lshlrev_b32 v3, 1, v3")
    a.wait_vm(("ml", 3))
    for k in range(4):
        b = 24 + 4 * k
        a.i("v_max_f32 v%d, v%d, v%d" % (40 + k, b, b + 2))
    for k in range(4):
        b = 24 + 4 * k
        a.i("v_sub_f32 v%d, v%d, v%d" % (b, b, 40 + k))
        a.i("v_sub_f32 v%d, v%d, v%d" % (b + 2, b + 2, 40 + k))
    for k in range(4):
        b = 24 + 4 * k
        a.i("v_mul_f32 v%d, s21, v%d" % (b, b))
        a.i("v_mul_f32 v%d, s21, v%d" % (b + 2, b + 2))
    for k in range(4):
        b = 24 + 4 * k
        a.i("v_exp_f32 v%d, v%d" % (b, b))
        a.i("v_exp_f32 v%d, v%d" % (b + 2, b + 2))
    for k in range(4):
        b = 24 + 4 * k
        a.i("v_mul_f32 v%d, v%d, v%d" % (b + 1, b, b + 1))
        a.i("v_fmac_f32 v%d, v%d, v%d" % (b + 1, b + 2, b + 3))
    for k in range(4):
        b = 24 + 4 * k
        a.i("v_rcp_f32 v%d, v%d" % (b + 1, b + 1))
        a.i("v_cndmask_b32 v%d, v%d, v%d, s[22:23]" % (b, b, b + 2))
    for k in range(4):
        b = 24 + 4 * k
        a.i("v_mul_f32 v%d, v%d, v%d" % (40 + k, b, b + 1))
    for k in range(4):
        a.wait_vm(("y", k))
        for t in range(4):
            if k == 0: a.i("v_mul_f32 v%d, v40, v%d" % (44 + t, 8 + t))
            else: a.i("v_fmac_f32 v%d, v%d, v%d" % (44 + t, 40 + k, 8 + 4 * k + t))
    a.i("v_permlane32_swap_b32 v44, v45")
    a.i("v_permlane32_swap_b32 v46, v47")
    a.i("v_add_f32 v44, v44, v45")
    a.i("v_add_f32 v46, v46, v47")
    a.i("v_permlane16_swap_b32 v44, v46")
    a.i("v_add_f32 v44, v44, v46")
    a.i("v_add_f32_dpp v44, v44, v44 quad_perm:[2,3,0,1] row_mask:0xf bank_mask:0xf")
    a.i("v_add_f32_dpp v44, v44, v44 row_ror:4 row_mask:0xf bank_mask:0xf")
    a.i("v_add_f32_dpp v44, v44, v44 row_ror:8 row_mask:0xf bank_mask:0xf")
    a.i("v_cvt_pk_bf16_f32 v44, v44, v44")
    a.i("s_mov_b32 exec_lo, 0x00030003")
    a.i("s_mov_b32 exec_hi, 0x00030003")
    a.i("buffer_store_short v44, v3, s[12:15], s19 offen", tag="o")
    a.label("L_end2")
    a.i("s_endpgm")
    k2 = a.text() + kd(k2name, 48, 32)
    head = HDR + "; @launch kernel=%s grid=(256,1,1) block=(512,1,1) lds=16384\n" % kname
    head += "; @launch kernel=%s grid=(256,1,1) block=(64,1,1) lds=0\n" % k2name
    head += '.amdgcn_target "amdgcn-amd-amdhsa--gfx950"\n.text\n'
    return head + k1 + k2

if __name__ == "__main__":
    out = sys.argv[1]
    kw = {}
    for arg in sys.argv[2:]:
        k, v = arg.split("=")
        kw[k] = int(v)
    open(out, "w").write(gen(**kw))
```

```python
import sys
from asmlib import Asm
from gen1 import NAME, HDR, srd, vr, kd, LOG2E, SCALE, WS_ML, WS_TS

def combine_tail(a, P, poll):
    pass

def gen(D=12, ts=0, fused=1, mapn=1, rnd=1, sleep=2, ilq=1, ilo=1, warm=0, hint=0, NSPIN=20000):
    NW = 8
    a = Asm()
    kname = NAME + "_kernel"
    a.raw(".globl %s\n.p2align 8\n.type %s,@function\n%s:" % (kname, kname, kname))
    SK, SV, SWQ, SWO, SX, SWS, SOUT, SDBG = 44, 48, 52, 56, 60, 64, 68, 72
    s_br, s_h, s_b, s_half, s_wave = 4, 5, 6, 7, 8
    s_kvbase, s_off, s_wqoff, s_wooff, s_tmp = 9, 10, 11, 12, 13
    s_grp, s_p = 14, 15
    s_m1, s_m0, s_m2 = 76, 78, 42
    s_log2e, s_scale = 80, 81
    s_rot = 3
    s_kvo = 82
    s_spin = 90
    s_inbox, s_mlrd, s_outoff, s_cnt, s_yoff, s_mlwr = 91, 92, 93, 94, 95, 96
    s_ts = 16
    nst = [0]
    def stamp():
        if not ts: return
        k = nst[0]; nst[0] += 1
        a.i("s_memrealtime s[%d:%d]" % (s_ts + 2 * k, s_ts + 2 * k + 1))
    a.i("s_cmp_ge_u32 s2, 256")
    a.i("s_cbranch_scc1 L_end1")
    a.i("s_load_dwordx16 s[16:31], s[0:1], 0")
    a.i("s_load_dwordx8 s[32:39], s[0:1], 64")
    a.i("s_load_dwordx2 s[40:41], s[0:1], 96")
    if ts: a.i("s_memrealtime s[98:99]")
    if mapn == 1:
        a.i("s_bfe_u32 s%d, s2, 0x10002" % s_br)
        a.i("s_and_b32 s%d, s2, 3" % s_tmp)
        a.i("s_lshl_b32 s%d, s%d, 3" % (s_tmp, s_tmp))
        a.i("s_lshr_b32 s%d, s2, 5" % s_h)
        a.i("s_or_b32 s%d, s%d, s%d" % (s_h, s_h, s_tmp))
    else:
        a.i("s_lshr_b32 s%d, s2, 7" % s_br)
        a.i("s_bfe_u32 s%d, s2, 0x20005" % s_tmp)
        a.i("s_lshl_b32 s%d, s%d, 3" % (s_tmp, s_tmp))
        a.i("s_and_b32 s%d, s2, 7" % s_h)
        a.i("s_or_b32 s%d, s%d, s%d" % (s_h, s_h, s_tmp))
    a.i("s_bfe_u32 s%d, s2, 0x10004" % s_b)
    a.i("s_bfe_u32 s%d, s2, 0x10003" % s_half)
    v_lane, v_kv, v_wq, v_wo, v_x = 1, 2, 3, 4, 5
    v_g, v_c = 6, 7
    v_mask = 8
    v_A = [12, 16]
    v_D = 20
    v_q = 24
    v_s = [28, 29]
    v_t0 = 30
    v_T = 40
    v_ldsD, v_zero, v_red, v_M, v_y, v_ord = 56, 57, 58, 59, 60, 61
    v_cnt = 62
    SLOT0 = 64
    NSLOT = (256 - SLOT0) // 4
    free = list(range(NSLOT))
    slot = lambda k: SLOT0 + 4 * k
    a.i("v_and_b32 v%d, 63, v0" % v_lane)
    a.i("v_lshrrev_b32 v%d, 6, v0" % v_t0)
    a.i("v_readfirstlane_b32 s%d, v%d" % (s_wave, v_t0))
    a.i("v_lshrrev_b32 v%d, 4, v%d" % (v_g, v_lane))
    a.i("v_and_b32 v%d, 15, v%d" % (v_c, v_lane))
    a.i("s_lshl_b32 s%d, s%d, 26" % (s_kvbase, s_b))
    a.i("s_lshl_b32 s%d, s%d, 21" % (s_tmp, s_h))
    a.i("s_add_u32 s%d, s%d, s%d" % (s_kvbase, s_kvbase, s_tmp))
    a.i("s_lshl_b32 s%d, s%d, 18" % (s_tmp, s_half))
    a.i("s_add_u32 s%d, s%d, s%d" % (s_kvbase, s_kvbase, s_tmp))
    a.i("s_add_u32 s%d, s%d, 0x%x" % (s_kvbase, s_kvbase, 6144 * 256))
    a.i("s_lshl_b32 s%d, s%d, 8" % (s_wqoff, s_h))
    a.i("s_lshl_b32 s%d, s%d, 17" % (s_wooff, s_h))
    a.i("s_lshl_b32 s%d, s%d, 10" % (s_off, s_b))
    a.i("v_and_b32 v%d, 0x1c0, v0" % v_wq)
    a.i("v_add_u32 v%d, v%d, v%d" % (v_wq, v_wq, v_g))
    a.i("v_lshl_add_u32 v%d, v%d, 2, v%d" % (v_x, v_c, v_wq))
    a.i("v_lshlrev_b32 v%d, 1, v%d" % (v_x, v_x))
    a.i("v_lshlrev_b32 v%d, 13, v%d" % (v_wq, v_wq))
    a.i("v_lshl_add_u32 v%d, v%d, 4, v%d" % (v_wq, v_c, v_wq))
    a.i("v_lshlrev_b32 v%d, 15, v%d" % (v_kv, v_t0))
    a.i("v_lshl_add_u32 v%d, v%d, 4, v%d" % (v_kv, v_lane, v_kv))
    if rnd:
        a.i("s_lshl_b32 s%d, s2, 3" % s_rot)
        a.i("s_add_u32 s%d, s%d, s%d" % (s_rot, s_rot, s_wave))
        a.i("s_add_u32 s%d, s%d, 1" % (s_rot, s_rot))
        a.i("s_mul_i32 s%d, s%d, 0x9e3779b1" % (s_rot, s_rot))
        a.i("s_lshr_b32 s%d, s%d, 15" % (s_tmp, s_rot))
        a.i("s_xor_b32 s%d, s%d, s%d" % (s_rot, s_rot, s_tmp))
        a.i("s_mul_i32 s%d, s%d, 0x85ebca6b" % (s_rot, s_rot))
        a.i("s_lshr_b32 s%d, s%d, 13" % (s_rot, s_rot))
    else:
        a.i("s_lshr_b32 s%d, s2, 3" % s_rot)
        a.i("s_add_u32 s%d, s%d, s%d" % (s_rot, s_rot, s_wave))
        a.i("s_lshl_b32 s%d, s%d, 12" % (s_rot, s_rot))
    a.i("s_and_b32 s%d, s%d, 0x7000" % (s_kvo, s_rot))
    a.i("s_add_u32 s%d, s%d, s%d" % (s_kvo, s_kvo, s_kvbase))
    a.i("s_lshl_b32 s%d, s%d, 1" % (s_grp, s_br))
    a.i("s_or_b32 s%d, s%d, s%d" % (s_grp, s_grp, s_b))
    a.i("s_lshl_b32 s%d, s%d, 1" % (s_p, s_h))
    a.i("s_or_b32 s%d, s%d, s%d" % (s_p, s_p, s_half))
    a.i("s_lshl_b32 s%d, s%d, 6" % (s_inbox, s_grp))
    a.i("s_add_u32 s%d, s%d, s%d" % (s_inbox, s_inbox, s_p))
    a.i("s_lshl_b32 s%d, s%d, 3" % (s_mlwr, s_inbox))
    a.i("s_add_u32 s%d, s%d, 0x%x" % (s_mlwr, s_mlwr, WS_ML))
    a.i("s_lshl_b32 s%d, s%d, 12" % (s_inbox, s_inbox))
    a.i("v_lshlrev_b32 v%d, 4, v%d" % (v_ord, v_lane))
    a.i("v_mov_b32 v%d, 0" % v_zero)
    for t in range(4): a.i("v_mov_b32 v%d, -1" % (v_T + t))
    a.i("s_waitcnt lgkmcnt(0)")
    a.i("s_cmp_eq_u32 s%d, 0" % s_br)
    def sel(r, A, B, sz):
        a.i("s_cselect_b32 s%d, s%d, s%d" % (r, A, B))
        a.i("s_cselect_b32 s%d, s%d, s%d" % (r + 1, A + 1, B + 1))
        a.i("s_mov_b32 s%d, 0x%x" % (r + 2, sz))
        a.i("s_mov_b32 s%d, 0x20000" % (r + 3))
    sel(SX, 16, 26, 2048)
    sel(SWQ, 22, 32, 0x400000)
    sel(SK, 18, 28, 0x8000000)
    sel(SV, 20, 30, 0x8000000)
    sel(SWO, 24, 34, 0x400000)
    srd(a, SWS, 40, 41, 0x400000)
    if fused:
        a.i("s_cmp_lg_u32 s%d, 7" % s_wave)
        a.i("s_cbranch_scc1 L_noclear")
        for k in range(4):
            a.i("buffer_store_dwordx4 %s, v%d, s[%d:%d], s%d offen offset:%d sc1" % (vr(v_T), v_ord, SWS, SWS + 3, s_inbox, k * 1024))
        a.i("s_mov_b64 exec, 1")
        a.i("buffer_store_dwordx2 v[%d:%d], v%d, s[%d:%d], s%d offen sc1" % (v_T, v_T + 1, v_zero, SWS, SWS + 3, s_mlwr))
        a.i("s_mov_b64 exec, -1")
        a.label("L_noclear")
        a.vm = []
    a.i("buffer_load_ushort v%d, v%d, s[%d:%d], s%d offen" % (v_x, v_x, SX, SX + 3, s_off), tag="x")
    where = {}
    kvo_done = [1]
    def load(key):
        kind, i = key
        k = free.pop(0); where[key] = k
        if kind == "wq":
            if i > 0: a.i("s_add_u32 s%d, s%d, 32768" % (s_wqoff, s_wqoff))
            a.i("buffer_load_dwordx4 %s, v%d, s[%d:%d], s%d offen nt" % (vr(slot(k)), v_wq, SWQ, SWQ + 3, s_wqoff), tag=key)
        elif kind == "wo":
            if i > 0: a.i("s_add_u32 s%d, s%d, 4096" % (s_wooff, s_wooff))
            a.i("buffer_load_dwordx4 %s, v%d, s[%d:%d], s%d offen nt" % (vr(slot(k)), v_wo, SWO, SWO + 3, s_wooff), tag=key)
        else:
            j = i // 4
            if j >= kvo_done[0]:
                a.i("s_add_u32 s%d, s%d, 4096" % (s_rot, s_rot))
                a.i("s_and_b32 s%d, s%d, 0x7000" % (s_kvo + j, s_rot))
                a.i("s_add_u32 s%d, s%d, s%d" % (s_kvo + j, s_kvo + j, s_kvbase))
                kvo_done[0] = j + 1
            r = SK if kind == "k" else SV
            a.i("buffer_load_dwordx4 %s, v%d, s[%d:%d], s%d offen offset:%d nt" % (vr(slot(k)), v_kv, r, r + 3, s_kvo + j, (i % 4) * 1024), tag=key)
    L = []
    if ilq:
        for i in range(16): L += [("wq", i), ("k", i)]
        L += [("k", i) for i in range(16, 32)]
    else:
        L += [("wq", i) for i in range(16)] + [("k", i) for i in range(32)]
    if ilo:
        for i in range(16): L += [("wo", i), ("v", i)]
        L += [("v", i) for i in range(16, 32)]
    else:
        L += [("wo", i) for i in range(16)] + [("v", i) for i in range(32)]
    idx = {k: n for n, k in enumerate(L)}
    st = {"issued": 0}
    def issue_upto(n):
        while st["issued"] <= min(n, len(L) - 1) and free:
            load(L[st["issued"]]); st["issued"] += 1
    def need(key):
        assert idx[key] < st["issued"], key
        a.wait_vm(key)
    def done(key):
        free.append(where.pop(key))
        issue_upto(idx[key] + D)
    issue_upto(D - 1)
    a.i("v_lshrrev_b32 v%d, 8, v0" % v_t0)
    a.i("v_lshlrev_b32 v%d, 16, v%d" % (v_wo, v_t0))
    a.i("v_lshl_add_u32 v%d, v%d, 10, v%d" % (v_wo, v_g, v_wo))
    a.i("v_bfe_u32 v%d, v0, 6, 2" % (v_t0 + 1))
    a.i("v_lshl_add_u32 v%d, v%d, 8, v%d" % (v_wo, v_t0 + 1, v_wo))
    a.i("v_lshl_add_u32 v%d, v%d, 4, v%d" % (v_wo, v_c, v_wo))
    srd(a, SOUT, 36, 37, 4096)
    srd(a, SDBG, 38, 39, 256)
    for (r, val) in ((s_m1, 0xcccccccc), (s_m0, 0xaaaaaaaa), (s_m2, 0xf0f0f0f0)):
        a.i("s_mov_b32 s%d, 0x%x" % (r, val)); a.i("s_mov_b32 s%d, 0x%x" % (r + 1, val))
    a.i("s_mov_b32 s%d, 0x%x" % (s_log2e, LOG2E))
    a.i("s_mov_b32 s%d, 0x%x" % (s_scale, SCALE))
    a.i("v_mov_b32 v%d, 0xffff" % (v_t0 + 2))
    a.i("v_mov_b32 v%d, 0xffff0000" % (v_t0 + 3))
    a.i("v_cndmask_b32 v%d, v%d, v%d, s[%d:%d]" % (v_t0 + 2, v_t0 + 2, v_t0 + 3, s_m0, s_m0 + 1))
    a.i("v_bfe_u32 v%d, v0, 1, 2" % (v_t0 + 3))
    for t in range(4):
        a.i("v_cmp_eq_u32 vcc, %d, v%d" % (t, v_t0 + 3))
        a.i("v_cndmask_b32 v%d, 0, v%d, vcc" % (v_mask + t, v_t0 + 2))
    a.i("v_lshrrev_b32 v%d, 6, v0" % (v_t0 + 2))
    a.i("v_lshlrev_b32 v%d, 9, v%d" % (v_ldsD, v_t0 + 2))
    a.i("v_lshl_add_u32 v%d, v%d, 5, v%d" % (v_ldsD, v_c, v_ldsD))
    a.i("v_and_b32 v%d, 1, v%d" % (v_t0 + 3, v_g))
    a.i("v_lshl_add_u32 v%d, v%d, 4, v%d" % (v_ldsD, v_t0 + 3, v_ldsD))
    a.i("v_lshlrev_b32 v%d, 2, v%d" % (v_red, v_t0 + 2))
    a.i("v_lshl_add_u32 v%d, v%d, 5, v%d" % (v_red, v_g, v_red))
    a.i("v_lshl_add_u32 v%d, v%d, 4, v%d" % (v_y, v_t0 + 1, v_c))
    a.i("v_lshlrev_b32 v%d, 12, v%d" % (v_y, v_y))
    a.i("v_lshl_add_u32 v%d, v%d, 5, v%d" % (v_y, v_t0, v_y))
    a.i("v_lshl_add_u32 v%d, v%d, 4, v%d" % (v_y, v_g, v_y))
    a.i("s_lshl_b32 s%d, s%d, 18" % (s_yoff, s_grp))
    a.i("s_lshl_b32 s%d, s%d, 6" % (s_tmp, s_p))
    a.i("s_add_u32 s%d, s%d, s%d" % (s_yoff, s_yoff, s_tmp))
    a.i("s_lshl_b32 s%d, s%d, 9" % (s_mlrd, s_grp))
    a.i("s_add_u32 s%d, s%d, 0x%x" % (s_mlrd, s_mlrd, WS_ML))
    a.i("s_lshl_b32 s%d, s%d, 6" % (s_cnt, s_grp))
    a.i("s_lshl_b32 s%d, s%d, 11" % (s_outoff, s_b))
    a.i("s_lshl_b32 s%d, s%d, 10" % (s_tmp, s_br))
    a.i("s_add_u32 s%d, s%d, s%d" % (s_outoff, s_outoff, s_tmp))
    a.i("s_lshl_b32 s%d, s%d, 4" % (s_tmp, s_p))
    a.i("s_add_u32 s%d, s%d, s%d" % (s_outoff, s_outoff, s_tmp))
    def gemv_block(vec, keys, first, stream=True):
        def buildA(i):
            A = v_A[i % 2]
            for t in range(4):
                a.i("v_and_b32_dpp v%d, v%d, v%d row_newbcast:%d row_mask:0xf bank_mask:0xf" % (A + t, vec, v_mask + t, i))
        buildA(0)
        for i, key in enumerate(keys):
            if i + 1 < len(keys): buildA(i + 1)
            if stream: need(key)
            c = "0" if (first and i == 0) else vr(v_D)
            a.i("v_mfma_f32_16x16x32_bf16 %s, %s, %s, %s" % (vr(v_D), vr(v_A[i % 2]), vr(slot(where[key])), c))
            if stream: done(key)
    a.wait_vm("x")
    if fused:
        a.i("s_cmp_lg_u32 s%d, 7" % s_wave)
        a.i("s_cbranch_scc1 L_nosig")
        a.i("v_mov_b32 v%d, 1" % v_cnt)
        a.i("s_mov_b64 exec, 1")
        a.i("buffer_atomic_add v%d, v%d, s[%d:%d], s%d offen sc1" % (v_cnt, v_zero, SDBG, SDBG + 3, s_cnt))
        a.vm.pop()
        a.i("s_mov_b64 exec, -1")
        a.i("s_waitcnt vmcnt(0)")
        a.label("L_nosig")
    a.i("v_lshl_or_b32 v%d, v%d, 16, v%d" % (v_x, v_x, v_x))
    gemv_block(v_x, [("wq", i) for i in range(16)], True)
    stamp()
    a.i("ds_write_b128 v%d, %s" % (v_ldsD, vr(v_D)))
    a.i("v_lshlrev_b32 v%d, 3, v%d" % (v_t0, v_lane))
    a.i("v_lshlrev_b32 v%d, 2, v0" % (v_t0 + 1))
    a.i("v_and_b32 v%d, 0x700, v%d" % (v_t0 + 3, v_t0 + 1))
    a.i("v_lshl_add_u32 v%d, v%d, 4, v%d" % (v_t0 + 3, v_c, v_t0 + 3))
    a.i("s_waitcnt lgkmcnt(0)")
    a.i("s_barrier")
    for w in range(8):
        a.i("ds_read_b64 v[%d:%d], v%d offset:%d" % (v_T + 2 * w, v_T + 2 * w + 1, v_t0, w * 512))
    a.i("s_waitcnt lgkmcnt(0)")
    for step in (1, 2, 4):
        for w in range(0, 8, 2 * step):
            a.i("v_add_f32 v%d, v%d, v%d" % (v_T + 2 * w, v_T + 2 * w, v_T + 2 * (w + step)))
            a.i("v_add_f32 v%d, v%d, v%d" % (v_T + 2 * w + 1, v_T + 2 * w + 1, v_T + 2 * (w + step) + 1))
    a.i("v_cvt_pk_bf16_f32 v%d, v%d, v%d" % (v_T, v_T, v_T + 1))
    a.i("ds_write_b32 v%d, v%d offset:4096" % (v_t0 + 1, v_T))
    a.i("s_waitcnt lgkmcnt(0)")
    a.i("ds_read_b128 %s, v%d offset:4096" % (vr(v_q), v_t0 + 3))
    a.i("s_waitcnt lgkmcnt(0)")
    stamp()
    for blk in range(2):
        for i in range(16):
            a.i("v_mov_b32 v%d, 0" % (v_T + i))
        for i in range(16):
            key = ("k", blk * 16 + i)
            need(key)
            for t in range(4):
                a.i("v_dot2c_f32_bf16 v%d, v%d, v%d" % (v_T + i, slot(where[key]) + t, v_q + t))
            done(key)
            if fused and blk == 1 and i == 4:
                a.i("buffer_load_dword v%d, v%d, s[%d:%d], s%d offen sc1" % (v_cnt, v_zero, SDBG, SDBG + 3, s_cnt), tag="cnt")
        T = v_T
        for k in range(8):
            a.i("v_add_f32_dpp v%d, v%d, v%d row_ror:8 row_mask:0xf bank_mask:0x3" % (T + k, T + k, T + k))
        for k in range(8):
            a.i("v_add_f32_dpp v%d, v%d, v%d row_ror:8 row_mask:0xf bank_mask:0xc" % (T + k, T + k + 8, T + k + 8))
        for k in range(4):
            a.i("v_add_f32_dpp v%d, v%d, v%d row_half_mirror row_mask:0xf bank_mask:0x5" % (T + k, T + k, T + k))
        for k in range(4):
            a.i("v_add_f32_dpp v%d, v%d, v%d row_half_mirror row_mask:0xf bank_mask:0xa" % (T + k, T + k + 4, T + k + 4))
        for k in range(4):
            a.i("v_add_f32_dpp v%d, v%d, v%d quad_perm:[2,3,0,1] row_mask:0xf bank_mask:0xf" % (T + k, T + k, T + k))
        for k in range(2):
            a.i("v_cndmask_b32 v%d, v%d, v%d, s[%d:%d]" % (T + k, T + k, T + k + 2, s_m1, s_m1 + 1))
        for k in range(2):
            a.i("v_add_f32_dpp v%d, v%d, v%d quad_perm:[1,0,3,2] row_mask:0xf bank_mask:0xf" % (T + k, T + k, T + k))
        s = v_s[blk]
        a.i("v_cndmask_b32 v%d, v%d, v%d, s[%d:%d]" % (s, T, T + 1, s_m0, s_m0 + 1))
        a.i("v_cvt_pk_bf16_f32 v%d, v%d, v%d" % (s, s, s))
        a.i("v_and_b32 v%d, 0xffff0000, v%d" % (s, s))
        a.i("v_mul_f32 v%d, s%d, v%d" % (s, s_scale, s))
        a.i("v_cvt_pk_bf16_f32 v%d, v%d, v%d" % (s, s, s))
        a.i("v_and_b32 v%d, 0xffff0000, v%d" % (s, s))
    stamp()
    m = v_t0
    def wave_red(op, r):
        for rot in (8, 4, 2, 1):
            a.i("%s_dpp v%d, v%d, v%d row_ror:%d row_mask:0xf bank_mask:0xf" % (op, r, r, r, rot))
        a.i("%s_dpp v%d, v%d, v%d row_bcast:15 row_mask:0xa bank_mask:0xf" % (op, r, r, r))
        a.i("%s_dpp v%d, v%d, v%d row_bcast:31 row_mask:0xc bank_mask:0xf" % (op, r, r, r))
    a.i("v_max_f32 v%d, v%d, v%d" % (m, v_s[0], v_s[1]))
    wave_red("v_max_f32", m)
    a.i("ds_write_b32 v%d, v%d offset:6144" % (v_red, m))
    a.i("s_waitcnt lgkmcnt(0)")
    a.i("s_barrier")
    a.i("ds_read_b128 %s, v%d offset:%d" % (vr(v_T), v_zero, 6144 + 96))
    a.i("ds_read_b128 %s, v%d offset:%d" % (vr(v_T + 4), v_zero, 6144 + 112))
    a.i("s_waitcnt lgkmcnt(0)")
    a.i("v_max3_f32 v%d, v%d, v%d, v%d" % (v_M, v_T, v_T + 1, v_T + 2))
    a.i("v_max3_f32 v%d, v%d, v%d, v%d" % (v_M, v_M, v_T + 3, v_T + 4))
    a.i("v_max3_f32 v%d, v%d, v%d, v%d" % (v_M, v_M, v_T + 5, v_T + 6))
    a.i("v_max_f32 v%d, v%d, v%d" % (v_M, v_M, v_T + 7))
    for s in v_s: a.i("v_sub_f32 v%d, v%d, v%d" % (s, s, v_M))
    for s in v_s: a.i("v_mul_f32 v%d, s%d, v%d" % (s, s_log2e, s))
    for s in v_s: a.i("v_exp_f32 v%d, v%d" % (s, s))
    l = v_t0
    a.i("v_add_f32 v%d, v%d, v%d" % (l, v_s[0], v_s[1]))
    for s in v_s: a.i("v_cvt_pk_bf16_f32 v%d, v%d, v%d" % (s, s, s))
    wave_red("v_add_f32", l)
    a.i("ds_write_b32 v%d, v%d offset:6400" % (v_red, l))
    if fused:
        a.wait_vm("cnt")
        a.i("s_mov_b32 s%d, %d" % (s_spin, NSPIN))
        a.label("L_rdy")
        a.i("v_readfirstlane_b32 s%d, v%d" % (s_tmp, v_cnt))
        a.i("s_cmp_ge_u32 s%d, 64" % s_tmp)
        a.i("s_cbranch_scc1 L_rdy_ok")
        a.i("s_sub_u32 s%d, s%d, 1" % (s_spin, s_spin))
        a.i("s_cbranch_scc1 L_rdy_ok")
        a.i("s_sleep 4")
        a.i("buffer_load_dword v%d, v%d, s[%d:%d], s%d offen sc1" % (v_cnt, v_zero, SDBG, SDBG + 3, s_cnt))
        a.vm.pop()
        a.i("s_waitcnt vmcnt(0)")
        a.i("s_branch L_rdy")
        a.label("L_rdy_ok")
    a.i("s_waitcnt lgkmcnt(0)")
    a.i("s_barrier")
    a.i("ds_read_b128 %s, v%d offset:%d" % (vr(v_T + 8), v_zero, 6400 + 96))
    a.i("ds_read_b128 %s, v%d offset:%d" % (vr(v_T + 12), v_zero, 6400 + 112))
    a.i("v_cmp_eq_u32 vcc, 0, v0")
    a.i("v_mov_b32 v%d, 0x7ffffff0" % (v_t0 + 1))
    a.i("v_cndmask_b32 v%d, v%d, v%d, vcc" % (v_t0 + 1, v_t0 + 1, v_zero))
    a.i("s_waitcnt lgkmcnt(0)")
    for step in (1, 2, 4):
        for w in range(0, 8, 2 * step):
            a.i("v_add_f32 v%d, v%d, v%d" % (v_T + 8 + w, v_T + 8 + w, v_T + 8 + w + step))
    a.i("v_min_u32 v%d, -2, v%d" % (v_T + 9, v_T + 8))
    a.i("v_mov_b32 v%d, v%d" % (v_T + 8, v_M))
    a.i("buffer_store_dwordx2 v[%d:%d], v%d, s[%d:%d], s%d offen%s" % (v_T + 8, v_T + 9, v_t0 + 1, SWS, SWS + 3, s_mlwr, " sc1" if fused else ""), tag="mlst")
    stamp()
    gemv_block(v_s[0], [("v", i) for i in range(16)], True)
    gemv_block(v_s[1], [("v", i) for i in range(16, 32)], False)
    stamp()
    a.i("ds_write_b128 v%d, %s offset:8192" % (v_ldsD, vr(v_D)))
    a.i("v_lshrrev_b32 v%d, 8, v0" % v_t0)
    a.i("v_lshlrev_b32 v%d, 8, v%d" % (v_t0, v_t0))
    a.i("v_lshl_add_u32 v%d, v%d, 4, v%d" % (v_t0, v_c, v_t0))
    a.i("v_lshl_add_u32 v%d, v%d, 2, v%d" % (v_t0, v_g, v_t0))
    a.i("s_waitcnt lgkmcnt(0)")
    a.i("s_barrier")
    for w in range(8):
        a.i("ds_read_b32 v%d, v%d offset:%d" % (v_T + w, v_t0, 8192 + w * 512))
    a.i("s_waitcnt lgkmcnt(0)")
    for step in (1, 2, 4):
        for w in range(0, 8, 2 * step):
            a.i("v_add_f32 v%d, v%d, v%d" % (v_T + w, v_T + w, v_T + w + step))
    v_o = v_s[0]
    a.i("v_cvt_pk_bf16_f32 v%d, v%d, v%d" % (v_o, v_T, v_T))
    gemv_block(v_o, [("wo", i) for i in range(16)], True, stream=False)
    a.i("s_mov_b32 exec_hi, 0")
    if fused:
        for t in range(4): a.i("v_min_u32 v%d, -2, v%d" % (v_D + t, v_D + t))
    a.i("buffer_store_dwordx4 %s, v%d, s[%d:%d], s%d offen%s" % (vr(v_D), v_y, SWS, SWS + 3, s_yoff, " sc1" if fused else ""), tag="y")
    stamp()
    a.i("s_cmp_lg_u32 s%d, 0" % s_wave)
    a.i("s_cbranch_scc1 %s" % ("L_ts" if ts else "L_end1"))
    a.i("s_mov_b32 exec_hi, -1")
    def emit_ts():
        if not ts: return
        a.label("L_ts")
        a.i("s_nop 7")
        stamp()
        a.i("s_waitcnt lgkmcnt(0)")
        a.i("s_mov_b64 exec, 1")
        a.i("s_lshl_b32 s%d, s2, 3" % s_off)
        a.i("s_add_u32 s%d, s%d, s%d" % (s_off, s_off, s_wave))
        a.i("s_lshl_b32 s%d, s%d, 6" % (s_off, s_off))
        a.i("s_add_u32 s%d, s%d, 0x%x" % (s_off, s_off, WS_TS))
        a.i("v_mov_b32 v%d, s98" % (v_T))
        for k in range(nst[0]):
            a.i("v_mov_b32 v%d, s%d" % (v_T + 1 + k, s_ts + 2 * k))
        a.i("buffer_store_dwordx4 %s, v%d, s[%d:%d], s%d offen" % (vr(v_T), v_zero, SWS, SWS + 3, s_off))
        a.i("buffer_store_dwordx4 %s, v%d, s[%d:%d], s%d offen offset:16" % (vr(v_T + 4), v_zero, SWS, SWS + 3, s_off))
        a.i("buffer_store_dwordx4 %s, v%d, s[%d:%d], s%d offen offset:32" % (vr(v_T + 8), v_zero, SWS, SWS + 3, s_off))
    def consumer(a, srd_ws, srd_out, s_inbox, s_mlrd, s_outoff, s_log2e, s_m2, vlane, vb, poll, s_spin):
        vy, vml, vf, vacc, vt = vb, vb + 16, vb + 32, vb + 36, vb + 40
        sc = " sc1" if poll else ""
        a.i("v_lshlrev_b32 v%d, 4, v%d" % (vt, vlane))
        a.i("v_lshrrev_b32 v%d, 3, v%d" % (vt + 1, vlane))
        a.i("v_lshlrev_b32 v%d, 4, v%d" % (vt + 1, vt + 1))
        if poll:
            a.i("s_mov_b32 s%d, %d" % (s_spin, NSPIN))
            a.label("L_pml")
        for k in range(4):
            a.i("buffer_load_dwordx4 %s, v%d, s[%d:%d], s%d offen offset:%d%s" % (vr(vml + 4 * k), vt + 1, srd_ws, srd_ws + 3, s_mlrd, k * 128, sc), tag=("ml", k))
        for k in range(4):
            a.i("buffer_load_dwordx4 %s, v%d, s[%d:%d], s%d offen offset:%d%s" % (vr(vy + 4 * k), vt, srd_ws, srd_ws + 3, s_inbox, k * 1024, sc), tag=("y", k))
        a.i("v_bfe_u32 v%d, v%d, 4, 1" % (vt + 2, vlane))
        a.i("v_bfe_u32 v%d, v%d, 5, 1" % (vt + 3, vlane))
        a.i("v_lshl_add_u32 v%d, v%d, 1, v%d" % (vt + 2, vt + 2, vt + 3))
        a.i("v_and_b32 v%d, 1, v%d" % (vt + 3, vlane))
        a.i("v_lshl_add_u32 v%d, v%d, 2, v%d" % (vt + 2, vt + 3, vt + 2))
        a.i("v_lshlrev_b32 v%d, 1, v%d" % (vt + 2, vt + 2))
        a.wait_vm(("ml", 3))
        def anymark(base, dst):
            a.i("v_max3_u32 v%d, v%d, v%d, v%d" % (dst, base, base + 1, base + 2))
            for k in range(3, 15, 2):
                a.i("v_max3_u32 v%d, v%d, v%d, v%d" % (dst, dst, base + k, base + k + 1))
            a.i("v_max_u32 v%d, v%d, v%d" % (dst, dst, base + 15))
            a.i("v_cmp_eq_u32 vcc, -1, v%d" % dst)
        if poll:
            anymark(vml, vt + 4)
            a.i("s_cbranch_vccz L_pml_ok")
            a.i("s_sub_u32 s%d, s%d, 1" % (s_spin, s_spin))
            a.i("s_cbranch_scc1 L_pml_ok")
            a.i("s_waitcnt vmcnt(0)")
            a.i("s_sleep %d" % sleep)
            a.i("s_branch L_pml")
            a.label("L_pml_ok")
        R4 = range(4)
        for k in R4: a.i("v_max_f32 v%d, v%d, v%d" % (vf + k, vml + 4 * k, vml + 4 * k + 2))
        for k in R4:
            b = vml + 4 * k
            a.i("v_sub_f32 v%d, v%d, v%d" % (b, b, vf + k))
            a.i("v_sub_f32 v%d, v%d, v%d" % (b + 2, b + 2, vf + k))
        for k in R4:
            b = vml + 4 * k
            a.i("v_mul_f32 v%d, s%d, v%d" % (b, s_log2e, b))
            a.i("v_mul_f32 v%d, s%d, v%d" % (b + 2, s_log2e, b + 2))
        for k in R4:
            b = vml + 4 * k
            a.i("v_exp_f32 v%d, v%d" % (b, b))
            a.i("v_exp_f32 v%d, v%d" % (b + 2, b + 2))
        for k in R4:
            b = vml + 4 * k
            a.i("v_mul_f32 v%d, v%d, v%d" % (b + 1, b, b + 1))
            a.i("v_fmac_f32 v%d, v%d, v%d" % (b + 1, b + 2, b + 3))
        for k in R4:
            b = vml + 4 * k
            a.i("v_rcp_f32 v%d, v%d" % (b + 1, b + 1))
            a.i("v_cndmask_b32 v%d, v%d, v%d, s[%d:%d]" % (b, b, b + 2, s_m2, s_m2 + 1))
        for k in R4:
            b = vml + 4 * k
            a.i("v_mul_f32 v%d, v%d, v%d" % (vf + k, b, b + 1))
        if poll:
            a.label("L_py")
            a.wait_vm(("y", 3))
            anymark(vy, vt + 4)
            a.i("s_cbranch_vccz L_py_ok")
            a.i("s_sub_u32 s%d, s%d, 1" % (s_spin, s_spin))
            a.i("s_cbranch_scc1 L_py_ok")
            if sleep: a.i("s_sleep %d" % sleep)
            for k in range(4):
                a.i("buffer_load_dwordx4 %s, v%d, s[%d:%d], s%d offen offset:%d%s" % (vr(vy + 4 * k), vt, srd_ws, srd_ws + 3, s_inbox, k * 1024, sc))
            a.vm = []
            a.i("s_branch L_py")
            a.label("L_py_ok")
        for k in R4:
            a.wait_vm(("y", k))
            for t in range(4):
                if k == 0: a.i("v_mul_f32 v%d, v%d, v%d" % (vacc + t, vf, vy + t))
                else: a.i("v_fmac_f32 v%d, v%d, v%d" % (vacc + t, vf + k, vy + 4 * k + t))
        a.i("v_permlane32_swap_b32 v%d, v%d" % (vacc, vacc + 1))
        a.i("v_permlane32_swap_b32 v%d, v%d" % (vacc + 2, vacc + 3))
        a.i("v_add_f32 v%d, v%d, v%d" % (vacc, vacc, vacc + 1))
        a.i("v_add_f32 v%d, v%d, v%d" % (vacc + 2, vacc + 2, vacc + 3))
        a.i("v_permlane16_swap_b32 v%d, v%d" % (vacc, vacc + 2))
        a.i("v_add_f32 v%d, v%d, v%d" % (vacc, vacc, vacc + 2))
        a.i("v_add_f32_dpp v%d, v%d, v%d quad_perm:[2,3,0,1] row_mask:0xf bank_mask:0xf" % (vacc, vacc, vacc))
        a.i("v_add_f32_dpp v%d, v%d, v%d row_ror:4 row_mask:0xf bank_mask:0xf" % (vacc, vacc, vacc))
        a.i("v_add_f32_dpp v%d, v%d, v%d row_ror:8 row_mask:0xf bank_mask:0xf" % (vacc, vacc, vacc))
        a.i("v_cvt_pk_bf16_f32 v%d, v%d, v%d" % (vacc, vacc, vacc))
        a.i("s_mov_b32 exec_lo, 0x00030003")
        a.i("s_mov_b32 exec_hi, 0x00030003")
        a.i("buffer_store_short v%d, v%d, s[%d:%d], s%d offen" % (vacc, vt + 2, srd_out, srd_out + 3, s_outoff))
    if fused:
        a.vm = []
        a.i("s_nop 7")
        consumer(a, SWS, SOUT, s_inbox, s_mlrd, s_outoff, s_log2e, s_m2, v_lane, 64, True, s_spin)
    emit_ts()
    a.label("L_end1")
    a.i("s_endpgm")
    k1 = a.text() + kd(kname, 256, 102)
    if fused:
        head = HDR + "; @launch grid=(256,1,1) block=(512,1,1) lds=16384\n"
        head += '.amdgcn_target "amdgcn-amd-amdhsa--gfx950"\n.text\n'
        return head + k1
    a = Asm()
    k2name = "combine_kernel"
    a.raw(".globl %s\n.p2align 8\n.type %s,@function\n%s:" % (k2name, k2name, k2name))
    a.i("s_cmp_ge_u32 s2, 256")
    a.i("s_cbranch_scc1 L_end2")
    a.i("s_load_dwordx2 s[4:5], s[0:1], 80")
    a.i("s_load_dwordx2 s[6:7], s[0:1], 96")
    a.i("s_lshl_b32 s16, s2, 12")
    a.i("s_lshr_b32 s17, s2, 6")
    a.i("s_lshl_b32 s18, s17, 9")
    a.i("s_add_u32 s18, s18, 0x%x" % WS_ML)
    a.i("s_and_b32 s19, s17, 1")
    a.i("s_lshl_b32 s19, s19, 11")
    a.i("s_lshr_b32 s20, s17, 1")
    a.i("s_lshl_b32 s20, s20, 10")
    a.i("s_add_u32 s19, s19, s20")
    a.i("s_and_b32 s20, s2, 63")
    a.i("s_lshl_b32 s20, s20, 4")
    a.i("s_add_u32 s19, s19, s20")
    a.i("s_mov_b32 s21, 0x%x" % LOG2E)
    a.i("s_mov_b32 s22, 0xf0f0f0f0")
    a.i("s_mov_b32 s23, 0xf0f0f0f0")
    a.i("s_waitcnt lgkmcnt(0)")
    srd(a, 8, 6, 7, 0x400000)
    srd(a, 12, 4, 5, 4096)
    consumer(a, 8, 12, 16, 18, 19, 21, 22, 0, 4, False, 24)
    a.label("L_end2")
    a.i("s_endpgm")
    k2 = a.text() + kd(k2name, 56, 32)
    head = HDR + "; @launch kernel=%s grid=(256,1,1) block=(512,1,1) lds=16384\n" % kname
    head += "; @launch kernel=%s grid=(256,1,1) block=(64,1,1) lds=0\n" % k2name
    head += '.amdgcn_target "amdgcn-amd-amdhsa--gfx950"\n.text\n'
    return head + k1 + k2

if __name__ == "__main__":
    out = sys.argv[1]
    kw = {}
    for arg in sys.argv[2:]:
        k, v = arg.split("=")
        kw[k] = int(v, 0)
    open(out, "w").write(gen(**kw))
```

```python
import sys
from asmlib import Asm
from gen1 import NAME, HDR, srd, vr, kd, LOG2E, SCALE, WS_ML, WS_TS

def combine_tail(a, P, poll):
    pass

def gen(D=12, ts=0, fused=1, mapn=1, rnd=1, sleep=2, ilq=1, ilo=1, warm=0, hint=0, NSPIN=20000, pad=0, kvnt=1, wnt=1):
    NW = 8
    WNT = " nt" if wnt else ""
    KVNT = " nt" if kvnt else ""
    a = Asm()
    kname = NAME + "_kernel"
    a.raw(".globl %s\n.p2align 8\n.type %s,@function\n%s:" % (kname, kname, kname))
    SK, SV, SWQ, SWO, SX, SWS, SOUT, SDBG = 44, 48, 52, 56, 60, 64, 68, 72
    s_br, s_h, s_b, s_half, s_wave = 4, 5, 6, 7, 8
    s_kvbase, s_off, s_wqoff, s_wooff, s_tmp = 9, 10, 11, 12, 13
    s_grp, s_p = 14, 15
    s_m1, s_m0, s_m2 = 76, 78, 42
    s_log2e, s_scale = 80, 81
    s_rot = 3
    s_kvo = 82
    s_spin = 90
    s_inbox, s_mlrd, s_outoff, s_cnt, s_yoff, s_mlwr = 91, 92, 93, 94, 95, 96
    s_ts = 16
    nst = [0]
    def stamp():
        if not ts: return
        k = nst[0]; nst[0] += 1
        a.i("s_memrealtime s[%d:%d]" % (s_ts + 2 * k, s_ts + 2 * k + 1))
    a.i("s_cmp_ge_u32 s2, 256")
    a.i("s_cbranch_scc1 L_end1")
    a.i("s_load_dwordx16 s[16:31], s[0:1], 0")
    a.i("s_load_dwordx8 s[32:39], s[0:1], 64")
    a.i("s_load_dwordx2 s[40:41], s[0:1], 96")
    if ts or pad: a.i("s_memrealtime s[98:99]")
    if mapn == 1:
        a.i("s_bfe_u32 s%d, s2, 0x10002" % s_br)
        a.i("s_and_b32 s%d, s2, 3" % s_tmp)
        a.i("s_lshl_b32 s%d, s%d, 3" % (s_tmp, s_tmp))
        a.i("s_lshr_b32 s%d, s2, 5" % s_h)
        a.i("s_or_b32 s%d, s%d, s%d" % (s_h, s_h, s_tmp))
    else:
        a.i("s_lshr_b32 s%d, s2, 7" % s_br)
        a.i("s_bfe_u32 s%d, s2, 0x20005" % s_tmp)
        a.i("s_lshl_b32 s%d, s%d, 3" % (s_tmp, s_tmp))
        a.i("s_and_b32 s%d, s2, 7" % s_h)
        a.i("s_or_b32 s%d, s%d, s%d" % (s_h, s_h, s_tmp))
    if mapn == 2:
        a.i("s_bfe_u32 s%d, s2, 0x10002" % s_br)
        a.i("s_lshr_b32 s%d, s2, 3" % s_h)
        a.i("s_bfe_u32 s%d, s2, 0x10001" % s_b)
        a.i("s_bfe_u32 s%d, s2, 0x10000" % s_half)
    else:
        a.i("s_bfe_u32 s%d, s2, 0x10004" % s_b)
        a.i("s_bfe_u32 s%d, s2, 0x10003" % s_half)
    v_lane, v_kv, v_wq, v_wo, v_x = 1, 2, 3, 4, 5
    v_g, v_c = 6, 7
    v_mask = 8
    v_A = [12, 16]
    v_D = 20
    v_q = 24
    v_s = [28, 29]
    v_t0 = 30
    v_T = 40
    v_ldsD, v_zero, v_red, v_M, v_y, v_ord = 56, 57, 58, 59, 60, 61
    v_cnt = 62
    SLOT0 = 64
    NSLOT = (256 - SLOT0) // 4
    free = list(range(NSLOT))
    slot = lambda k: SLOT0 + 4 * k
    a.i("v_and_b32 v%d, 63, v0" % v_lane)
    a.i("v_lshrrev_b32 v%d, 6, v0" % v_t0)
    a.i("v_readfirstlane_b32 s%d, v%d" % (s_wave, v_t0))
    a.i("v_lshrrev_b32 v%d, 4, v%d" % (v_g, v_lane))
    a.i("v_and_b32 v%d, 15, v%d" % (v_c, v_lane))
    a.i("s_lshl_b32 s%d, s%d, 26" % (s_kvbase, s_b))
    a.i("s_lshl_b32 s%d, s%d, 21" % (s_tmp, s_h))
    a.i("s_add_u32 s%d, s%d, s%d" % (s_kvbase, s_kvbase, s_tmp))
    a.i("s_lshl_b32 s%d, s%d, 18" % (s_tmp, s_half))
    a.i("s_add_u32 s%d, s%d, s%d" % (s_kvbase, s_kvbase, s_tmp))
    a.i("s_add_u32 s%d, s%d, 0x%x" % (s_kvbase, s_kvbase, 6144 * 256))
    a.i("s_lshl_b32 s%d, s%d, 8" % (s_wqoff, s_h))
    a.i("s_lshl_b32 s%d, s%d, 17" % (s_wooff, s_h))
    a.i("s_lshl_b32 s%d, s%d, 10" % (s_off, s_b))
    a.i("v_and_b32 v%d, 0x1c0, v0" % v_wq)
    a.i("v_add_u32 v%d, v%d, v%d" % (v_wq, v_wq, v_g))
    a.i("v_lshl_add_u32 v%d, v%d, 2, v%d" % (v_x, v_c, v_wq))
    a.i("v_lshlrev_b32 v%d, 1, v%d" % (v_x, v_x))
    a.i("v_lshlrev_b32 v%d, 13, v%d" % (v_wq, v_wq))
    a.i("v_lshl_add_u32 v%d, v%d, 4, v%d" % (v_wq, v_c, v_wq))
    a.i("v_lshlrev_b32 v%d, 15, v%d" % (v_kv, v_t0))
    a.i("v_lshl_add_u32 v%d, v%d, 4, v%d" % (v_kv, v_lane, v_kv))
    if rnd:
        a.i("s_lshl_b32 s%d, s2, 3" % s_rot)
        a.i("s_add_u32 s%d, s%d, s%d" % (s_rot, s_rot, s_wave))
        a.i("s_add_u32 s%d, s%d, 1" % (s_rot, s_rot))
        a.i("s_mul_i32 s%d, s%d, 0x9e3779b1" % (s_rot, s_rot))
        a.i("s_lshr_b32 s%d, s%d, 15" % (s_tmp, s_rot))
        a.i("s_xor_b32 s%d, s%d, s%d" % (s_rot, s_rot, s_tmp))
        a.i("s_mul_i32 s%d, s%d, 0x85ebca6b" % (s_rot, s_rot))
        a.i("s_lshr_b32 s%d, s%d, 13" % (s_rot, s_rot))
    else:
        a.i("s_lshr_b32 s%d, s2, 3" % s_rot)
        a.i("s_add_u32 s%d, s%d, s%d" % (s_rot, s_rot, s_wave))
        a.i("s_lshl_b32 s%d, s%d, 12" % (s_rot, s_rot))
    a.i("s_and_b32 s%d, s%d, 0x7000" % (s_kvo, s_rot))
    a.i("s_add_u32 s%d, s%d, s%d" % (s_kvo, s_kvo, s_kvbase))
    a.i("s_lshl_b32 s%d, s%d, 1" % (s_grp, s_br))
    a.i("s_or_b32 s%d, s%d, s%d" % (s_grp, s_grp, s_b))
    a.i("s_lshl_b32 s%d, s%d, 1" % (s_p, s_h))
    a.i("s_or_b32 s%d, s%d, s%d" % (s_p, s_p, s_half))
    a.i("s_lshl_b32 s%d, s%d, 6" % (s_inbox, s_grp))
    a.i("s_add_u32 s%d, s%d, s%d" % (s_inbox, s_inbox, s_p))
    a.i("s_lshl_b32 s%d, s%d, 3" % (s_mlwr, s_inbox))
    a.i("s_add_u32 s%d, s%d, 0x%x" % (s_mlwr, s_mlwr, WS_ML))
    a.i("s_lshl_b32 s%d, s%d, 12" % (s_inbox, s_inbox))
    a.i("v_lshlrev_b32 v%d, 4, v%d" % (v_ord, v_lane))
    a.i("v_mov_b32 v%d, 0" % v_zero)
    for t in range(4): a.i("v_mov_b32 v%d, -1" % (v_T + t))
    a.i("s_waitcnt lgkmcnt(0)")
    a.i("s_cmp_eq_u32 s%d, 0" % s_br)
    def sel(r, A, B, sz):
        a.i("s_cselect_b32 s%d, s%d, s%d" % (r, A, B))
        a.i("s_cselect_b32 s%d, s%d, s%d" % (r + 1, A + 1, B + 1))
        a.i("s_mov_b32 s%d, 0x%x" % (r + 2, sz))
        a.i("s_mov_b32 s%d, 0x20000" % (r + 3))
    sel(SX, 16, 26, 2048)
    sel(SWQ, 22, 32, 0x400000)
    sel(SK, 18, 28, 0x8000000)
    sel(SV, 20, 30, 0x8000000)
    sel(SWO, 24, 34, 0x400000)
    srd(a, SWS, 40, 41, 0x400000)
    if fused:
        a.i("s_cmp_lg_u32 s%d, 7" % s_wave)
        a.i("s_cbranch_scc1 L_noclear")
        for k in range(4):
            a.i("buffer_store_dwordx4 %s, v%d, s[%d:%d], s%d offen offset:%d sc1" % (vr(v_T), v_ord, SWS, SWS + 3, s_inbox, k * 1024))
        a.i("s_mov_b64 exec, 1")
        a.i("buffer_store_dwordx2 v[%d:%d], v%d, s[%d:%d], s%d offen sc1" % (v_T, v_T + 1, v_zero, SWS, SWS + 3, s_mlwr))
        a.i("s_mov_b64 exec, -1")
        a.label("L_noclear")
        a.vm = []
    a.i("buffer_load_ushort v%d, v%d, s[%d:%d], s%d offen" % (v_x, v_x, SX, SX + 3, s_off), tag="x")
    where = {}
    kvo_done = [1]
    def load(key):
        kind, i = key
        k = free.pop(0); where[key] = k
        if kind == "wq":
            if i > 0: a.i("s_add_u32 s%d, s%d, 32768" % (s_wqoff, s_wqoff))
            a.i("buffer_load_dwordx4 %s, v%d, s[%d:%d], s%d offen%s" % (vr(slot(k)), v_wq, SWQ, SWQ + 3, s_wqoff, WNT), tag=key)
        elif kind == "wo":
            if i > 0: a.i("s_add_u32 s%d, s%d, 4096" % (s_wooff, s_wooff))
            a.i("buffer_load_dwordx4 %s, v%d, s[%d:%d], s%d offen%s" % (vr(slot(k)), v_wo, SWO, SWO + 3, s_wooff, WNT), tag=key)
        else:
            j = i // 4
            if j >= kvo_done[0]:
                a.i("s_add_u32 s%d, s%d, 4096" % (s_rot, s_rot))
                a.i("s_and_b32 s%d, s%d, 0x7000" % (s_kvo + j, s_rot))
                a.i("s_add_u32 s%d, s%d, s%d" % (s_kvo + j, s_kvo + j, s_kvbase))
                kvo_done[0] = j + 1
            r = SK if kind == "k" else SV
            a.i("buffer_load_dwordx4 %s, v%d, s[%d:%d], s%d offen offset:%d%s" % (vr(slot(k)), v_kv, r, r + 3, s_kvo + j, (i % 4) * 1024, KVNT), tag=key)
    L = []
    if ilq:
        for i in range(16): L += [("wq", i), ("k", i)]
        L += [("k", i) for i in range(16, 32)]
    else:
        L += [("wq", i) for i in range(16)] + [("k", i) for i in range(32)]
    if ilo:
        for i in range(16): L += [("wo", i), ("v", i)]
        L += [("v", i) for i in range(16, 32)]
    else:
        L += [("wo", i) for i in range(16)] + [("v", i) for i in range(32)]
    idx = {k: n for n, k in enumerate(L)}
    st = {"issued": 0}
    def issue_upto(n):
        while st["issued"] <= min(n, len(L) - 1) and free:
            load(L[st["issued"]]); st["issued"] += 1
    def need(key):
        assert idx[key] < st["issued"], key
        a.wait_vm(key)
    def done(key):
        free.append(where.pop(key))
        issue_upto(idx[key] + D)
    issue_upto(D - 1)
    a.i("v_lshrrev_b32 v%d, 8, v0" % v_t0)
    a.i("v_lshlrev_b32 v%d, 16, v%d" % (v_wo, v_t0))
    a.i("v_lshl_add_u32 v%d, v%d, 10, v%d" % (v_wo, v_g, v_wo))
    a.i("v_bfe_u32 v%d, v0, 6, 2" % (v_t0 + 1))
    a.i("v_lshl_add_u32 v%d, v%d, 8, v%d" % (v_wo, v_t0 + 1, v_wo))
    a.i("v_lshl_add_u32 v%d, v%d, 4, v%d" % (v_wo, v_c, v_wo))
    srd(a, SOUT, 36, 37, 4096)
    srd(a, SDBG, 38, 39, 256)
    for (r, val) in ((s_m1, 0xcccccccc), (s_m0, 0xaaaaaaaa), (s_m2, 0xf0f0f0f0)):
        a.i("s_mov_b32 s%d, 0x%x" % (r, val)); a.i("s_mov_b32 s%d, 0x%x" % (r + 1, val))
    a.i("s_mov_b32 s%d, 0x%x" % (s_log2e, LOG2E))
    a.i("s_mov_b32 s%d, 0x%x" % (s_scale, SCALE))
    a.i("v_mov_b32 v%d, 0xffff" % (v_t0 + 2))
    a.i("v_mov_b32 v%d, 0xffff0000" % (v_t0 + 3))
    a.i("v_cndmask_b32 v%d, v%d, v%d, s[%d:%d]" % (v_t0 + 2, v_t0 + 2, v_t0 + 3, s_m0, s_m0 + 1))
    a.i("v_bfe_u32 v%d, v0, 1, 2" % (v_t0 + 3))
    for t in range(4):
        a.i("v_cmp_eq_u32 vcc, %d, v%d" % (t, v_t0 + 3))
        a.i("v_cndmask_b32 v%d, 0, v%d, vcc" % (v_mask + t, v_t0 + 2))
    a.i("v_lshrrev_b32 v%d, 6, v0" % (v_t0 + 2))
    a.i("v_lshlrev_b32 v%d, 9, v%d" % (v_ldsD, v_t0 + 2))
    a.i("v_lshl_add_u32 v%d, v%d, 5, v%d" % (v_ldsD, v_c, v_ldsD))
    a.i("v_and_b32 v%d, 1, v%d" % (v_t0 + 3, v_g))
    a.i("v_lshl_add_u32 v%d, v%d, 4, v%d" % (v_ldsD, v_t0 + 3, v_ldsD))
    a.i("v_lshlrev_b32 v%d, 2, v%d" % (v_red, v_t0 + 2))
    a.i("v_lshl_add_u32 v%d, v%d, 5, v%d" % (v_red, v_g, v_red))
    a.i("v_lshl_add_u32 v%d, v%d, 4, v%d" % (v_y, v_t0 + 1, v_c))
    a.i("v_lshlrev_b32 v%d, 12, v%d" % (v_y, v_y))
    a.i("v_lshl_add_u32 v%d, v%d, 5, v%d" % (v_y, v_t0, v_y))
    a.i("v_lshl_add_u32 v%d, v%d, 4, v%d" % (v_y, v_g, v_y))
    a.i("s_lshl_b32 s%d, s%d, 18" % (s_yoff, s_grp))
    a.i("s_lshl_b32 s%d, s%d, 6" % (s_tmp, s_p))
    a.i("s_add_u32 s%d, s%d, s%d" % (s_yoff, s_yoff, s_tmp))
    a.i("s_lshl_b32 s%d, s%d, 9" % (s_mlrd, s_grp))
    a.i("s_add_u32 s%d, s%d, 0x%x" % (s_mlrd, s_mlrd, WS_ML))
    a.i("s_lshl_b32 s%d, s%d, 6" % (s_cnt, s_grp))
    a.i("s_lshl_b32 s%d, s%d, 11" % (s_outoff, s_b))
    a.i("s_lshl_b32 s%d, s%d, 10" % (s_tmp, s_br))
    a.i("s_add_u32 s%d, s%d, s%d" % (s_outoff, s_outoff, s_tmp))
    a.i("s_lshl_b32 s%d, s%d, 4" % (s_tmp, s_p))
    a.i("s_add_u32 s%d, s%d, s%d" % (s_outoff, s_outoff, s_tmp))
    def gemv_block(vec, keys, first, stream=True):
        def buildA(i):
            A = v_A[i % 2]
            for t in range(4):
                a.i("v_and_b32_dpp v%d, v%d, v%d row_newbcast:%d row_mask:0xf bank_mask:0xf" % (A + t, vec, v_mask + t, i))
        buildA(0)
        for i, key in enumerate(keys):
            if i + 1 < len(keys): buildA(i + 1)
            if stream: need(key)
            c = "0" if (first and i == 0) else vr(v_D)
            a.i("v_mfma_f32_16x16x32_bf16 %s, %s, %s, %s" % (vr(v_D), vr(v_A[i % 2]), vr(slot(where[key])), c))
            if stream: done(key)
    a.wait_vm("x")
    if fused:
        a.i("s_cmp_lg_u32 s%d, 7" % s_wave)
        a.i("s_cbranch_scc1 L_nosig")
        a.i("v_mov_b32 v%d, 1" % v_cnt)
        a.i("s_mov_b64 exec, 1")
        a.i("buffer_atomic_add v%d, v%d, s[%d:%d], s%d offen sc1" % (v_cnt, v_zero, SDBG, SDBG + 3, s_cnt))
        a.vm.pop()
        a.i("s_mov_b64 exec, -1")
        a.i("s_waitcnt vmcnt(0)")
        a.label("L_nosig")
    a.i("v_lshl_or_b32 v%d, v%d, 16, v%d" % (v_x, v_x, v_x))
    gemv_block(v_x, [("wq", i) for i in range(16)], True)
    stamp()
    a.i("ds_write_b128 v%d, %s" % (v_ldsD, vr(v_D)))
    a.i("v_lshlrev_b32 v%d, 3, v%d" % (v_t0, v_lane))
    a.i("v_lshlrev_b32 v%d, 2, v0" % (v_t0 + 1))
    a.i("v_and_b32 v%d, 0x700, v%d" % (v_t0 + 3, v_t0 + 1))
    a.i("v_lshl_add_u32 v%d, v%d, 4, v%d" % (v_t0 + 3, v_c, v_t0 + 3))
    a.i("s_waitcnt lgkmcnt(0)")
    a.i("s_barrier")
    for w in range(8):
        a.i("ds_read_b64 v[%d:%d], v%d offset:%d" % (v_T + 2 * w, v_T + 2 * w + 1, v_t0, w * 512))
    a.i("s_waitcnt lgkmcnt(0)")
    for step in (1, 2, 4):
        for w in range(0, 8, 2 * step):
            a.i("v_add_f32 v%d, v%d, v%d" % (v_T + 2 * w, v_T + 2 * w, v_T + 2 * (w + step)))
            a.i("v_add_f32 v%d, v%d, v%d" % (v_T + 2 * w + 1, v_T + 2 * w + 1, v_T + 2 * (w + step) + 1))
    a.i("v_cvt_pk_bf16_f32 v%d, v%d, v%d" % (v_T, v_T, v_T + 1))
    a.i("ds_write_b32 v%d, v%d offset:4096" % (v_t0 + 1, v_T))
    a.i("s_waitcnt lgkmcnt(0)")
    a.i("ds_read_b128 %s, v%d offset:4096" % (vr(v_q), v_t0 + 3))
    a.i("s_waitcnt lgkmcnt(0)")
    stamp()
    for blk in range(2):
        for i in range(16):
            a.i("v_mov_b32 v%d, 0" % (v_T + i))
        for i in range(16):
            key = ("k", blk * 16 + i)
            need(key)
            for t in range(4):
                a.i("v_dot2c_f32_bf16 v%d, v%d, v%d" % (v_T + i, slot(where[key]) + t, v_q + t))
            done(key)
            if fused and blk == 1 and i == 4:
                a.i("buffer_load_dword v%d, v%d, s[%d:%d], s%d offen sc1" % (v_cnt, v_zero, SDBG, SDBG + 3, s_cnt), tag="cnt")
        T = v_T
        for k in range(8):
            a.i("v_add_f32_dpp v%d, v%d, v%d row_ror:8 row_mask:0xf bank_mask:0x3" % (T + k, T + k, T + k))
        for k in range(8):
            a.i("v_add_f32_dpp v%d, v%d, v%d row_ror:8 row_mask:0xf bank_mask:0xc" % (T + k, T + k + 8, T + k + 8))
        for k in range(4):
            a.i("v_add_f32_dpp v%d, v%d, v%d row_half_mirror row_mask:0xf bank_mask:0x5" % (T + k, T + k, T + k))
        for k in range(4):
            a.i("v_add_f32_dpp v%d, v%d, v%d row_half_mirror row_mask:0xf bank_mask:0xa" % (T + k, T + k + 4, T + k + 4))
        for k in range(4):
            a.i("v_add_f32_dpp v%d, v%d, v%d quad_perm:[2,3,0,1] row_mask:0xf bank_mask:0xf" % (T + k, T + k, T + k))
        for k in range(2):
            a.i("v_cndmask_b32 v%d, v%d, v%d, s[%d:%d]" % (T + k, T + k, T + k + 2, s_m1, s_m1 + 1))
        for k in range(2):
            a.i("v_add_f32_dpp v%d, v%d, v%d quad_perm:[1,0,3,2] row_mask:0xf bank_mask:0xf" % (T + k, T + k, T + k))
        s = v_s[blk]
        a.i("v_cndmask_b32 v%d, v%d, v%d, s[%d:%d]" % (s, T, T + 1, s_m0, s_m0 + 1))
        a.i("v_cvt_pk_bf16_f32 v%d, v%d, v%d" % (s, s, s))
        a.i("v_and_b32 v%d, 0xffff0000, v%d" % (s, s))
        a.i("v_mul_f32 v%d, s%d, v%d" % (s, s_scale, s))
        a.i("v_cvt_pk_bf16_f32 v%d, v%d, v%d" % (s, s, s))
        a.i("v_and_b32 v%d, 0xffff0000, v%d" % (s, s))
    stamp()
    m = v_t0
    def wave_red(op, r):
        for rot in (8, 4, 2, 1):
            a.i("%s_dpp v%d, v%d, v%d row_ror:%d row_mask:0xf bank_mask:0xf" % (op, r, r, r, rot))
        a.i("%s_dpp v%d, v%d, v%d row_bcast:15 row_mask:0xa bank_mask:0xf" % (op, r, r, r))
        a.i("%s_dpp v%d, v%d, v%d row_bcast:31 row_mask:0xc bank_mask:0xf" % (op, r, r, r))
    a.i("v_max_f32 v%d, v%d, v%d" % (m, v_s[0], v_s[1]))
    wave_red("v_max_f32", m)
    a.i("ds_write_b32 v%d, v%d offset:6144" % (v_red, m))
    a.i("s_waitcnt lgkmcnt(0)")
    a.i("s_barrier")
    a.i("ds_read_b128 %s, v%d offset:%d" % (vr(v_T), v_zero, 6144 + 96))
    a.i("ds_read_b128 %s, v%d offset:%d" % (vr(v_T + 4), v_zero, 6144 + 112))
    a.i("s_waitcnt lgkmcnt(0)")
    a.i("v_max3_f32 v%d, v%d, v%d, v%d" % (v_M, v_T, v_T + 1, v_T + 2))
    a.i("v_max3_f32 v%d, v%d, v%d, v%d" % (v_M, v_M, v_T + 3, v_T + 4))
    a.i("v_max3_f32 v%d, v%d, v%d, v%d" % (v_M, v_M, v_T + 5, v_T + 6))
    a.i("v_max_f32 v%d, v%d, v%d" % (v_M, v_M, v_T + 7))
    for s in v_s: a.i("v_sub_f32 v%d, v%d, v%d" % (s, s, v_M))
    for s in v_s: a.i("v_mul_f32 v%d, s%d, v%d" % (s, s_log2e, s))
    for s in v_s: a.i("v_exp_f32 v%d, v%d" % (s, s))
    l = v_t0
    a.i("v_add_f32 v%d, v%d, v%d" % (l, v_s[0], v_s[1]))
    for s in v_s: a.i("v_cvt_pk_bf16_f32 v%d, v%d, v%d" % (s, s, s))
    wave_red("v_add_f32", l)
    a.i("ds_write_b32 v%d, v%d offset:6400" % (v_red, l))
    if fused:
        a.wait_vm("cnt")
        a.i("s_mov_b32 s%d, %d" % (s_spin, NSPIN))
        a.label("L_rdy")
        a.i("v_readfirstlane_b32 s%d, v%d" % (s_tmp, v_cnt))
        a.i("s_cmp_ge_u32 s%d, 64" % s_tmp)
        a.i("s_cbranch_scc1 L_rdy_ok")
        a.i("s_sub_u32 s%d, s%d, 1" % (s_spin, s_spin))
        a.i("s_cbranch_scc1 L_rdy_ok")
        a.i("s_sleep 4")
        a.i("buffer_load_dword v%d, v%d, s[%d:%d], s%d offen sc1" % (v_cnt, v_zero, SDBG, SDBG + 3, s_cnt))
        a.vm.pop()
        a.i("s_waitcnt vmcnt(0)")
        a.i("s_branch L_rdy")
        a.label("L_rdy_ok")
    a.i("s_waitcnt lgkmcnt(0)")
    a.i("s_barrier")
    a.i("ds_read_b128 %s, v%d offset:%d" % (vr(v_T + 8), v_zero, 6400 + 96))
    a.i("ds_read_b128 %s, v%d offset:%d" % (vr(v_T + 12), v_zero, 6400 + 112))
    a.i("v_cmp_eq_u32 vcc, 0, v0")
    a.i("v_mov_b32 v%d, 0x7ffffff0" % (v_t0 + 1))
    a.i("v_cndmask_b32 v%d, v%d, v%d, vcc" % (v_t0 + 1, v_t0 + 1, v_zero))
    a.i("s_waitcnt lgkmcnt(0)")
    for step in (1, 2, 4):
        for w in range(0, 8, 2 * step):
            a.i("v_add_f32 v%d, v%d, v%d" % (v_T + 8 + w, v_T + 8 + w, v_T + 8 + w + step))
    a.i("v_min_u32 v%d, -2, v%d" % (v_T + 9, v_T + 8))
    a.i("v_mov_b32 v%d, v%d" % (v_T + 8, v_M))
    a.i("buffer_store_dwordx2 v[%d:%d], v%d, s[%d:%d], s%d offen%s" % (v_T + 8, v_T + 9, v_t0 + 1, SWS, SWS + 3, s_mlwr, " sc1" if fused else ""), tag="mlst")
    stamp()
    gemv_block(v_s[0], [("v", i) for i in range(16)], True)
    gemv_block(v_s[1], [("v", i) for i in range(16, 32)], False)
    stamp()
    a.i("ds_write_b128 v%d, %s offset:8192" % (v_ldsD, vr(v_D)))
    a.i("v_lshrrev_b32 v%d, 8, v0" % v_t0)
    a.i("v_lshlrev_b32 v%d, 8, v%d" % (v_t0, v_t0))
    a.i("v_lshl_add_u32 v%d, v%d, 4, v%d" % (v_t0, v_c, v_t0))
    a.i("v_lshl_add_u32 v%d, v%d, 2, v%d" % (v_t0, v_g, v_t0))
    a.i("s_waitcnt lgkmcnt(0)")
    a.i("s_barrier")
    for w in range(8):
        a.i("ds_read_b32 v%d, v%d offset:%d" % (v_T + w, v_t0, 8192 + w * 512))
    a.i("s_waitcnt lgkmcnt(0)")
    for step in (1, 2, 4):
        for w in range(0, 8, 2 * step):
            a.i("v_add_f32 v%d, v%d, v%d" % (v_T + w, v_T + w, v_T + w + step))
    v_o = v_s[0]
    a.i("v_cvt_pk_bf16_f32 v%d, v%d, v%d" % (v_o, v_T, v_T))
    gemv_block(v_o, [("wo", i) for i in range(16)], True, stream=False)
    a.i("s_mov_b32 exec_hi, 0")
    if fused:
        for t in range(4): a.i("v_min_u32 v%d, -2, v%d" % (v_D + t, v_D + t))
    a.i("buffer_store_dwordx4 %s, v%d, s[%d:%d], s%d offen%s" % (vr(v_D), v_y, SWS, SWS + 3, s_yoff, " sc1" if fused else ""), tag="y")
    stamp()
    a.i("s_cmp_lg_u32 s%d, 0" % s_wave)
    a.i("s_cbranch_scc1 %s" % ("L_ts" if ts else "L_end1"))
    a.i("s_mov_b32 exec_hi, -1")
    def emit_ts():
        if not ts: return
        a.label("L_ts")
        a.i("s_nop 7")
        stamp()
        a.i("s_waitcnt lgkmcnt(0)")
        a.i("s_mov_b64 exec, 1")
        a.i("s_lshl_b32 s%d, s2, 3" % s_off)
        a.i("s_add_u32 s%d, s%d, s%d" % (s_off, s_off, s_wave))
        a.i("s_lshl_b32 s%d, s%d, 6" % (s_off, s_off))
        a.i("s_add_u32 s%d, s%d, 0x%x" % (s_off, s_off, WS_TS))
        a.i("v_mov_b32 v%d, s98" % (v_T))
        for k in range(nst[0]):
            a.i("v_mov_b32 v%d, s%d" % (v_T + 1 + k, s_ts + 2 * k))
        a.i("buffer_store_dwordx4 %s, v%d, s[%d:%d], s%d offen" % (vr(v_T), v_zero, SWS, SWS + 3, s_off))
        a.i("buffer_store_dwordx4 %s, v%d, s[%d:%d], s%d offen offset:16" % (vr(v_T + 4), v_zero, SWS, SWS + 3, s_off))
        a.i("buffer_store_dwordx4 %s, v%d, s[%d:%d], s%d offen offset:32" % (vr(v_T + 8), v_zero, SWS, SWS + 3, s_off))
    def consumer(a, srd_ws, srd_out, s_inbox, s_mlrd, s_outoff, s_log2e, s_m2, vlane, vb, poll, s_spin):
        vy, vml, vf, vacc, vt = vb, vb + 16, vb + 32, vb + 36, vb + 40
        sc = " sc1" if poll else ""
        a.i("v_lshlrev_b32 v%d, 4, v%d" % (vt, vlane))
        a.i("v_lshrrev_b32 v%d, 3, v%d" % (vt + 1, vlane))
        a.i("v_lshlrev_b32 v%d, 4, v%d" % (vt + 1, vt + 1))
        if poll:
            a.i("s_mov_b32 s%d, %d" % (s_spin, NSPIN))
            a.label("L_pml")
        for k in range(4):
            a.i("buffer_load_dwordx4 %s, v%d, s[%d:%d], s%d offen offset:%d%s" % (vr(vml + 4 * k), vt + 1, srd_ws, srd_ws + 3, s_mlrd, k * 128, sc), tag=("ml", k))
        for k in range(4):
            a.i("buffer_load_dwordx4 %s, v%d, s[%d:%d], s%d offen offset:%d%s" % (vr(vy + 4 * k), vt, srd_ws, srd_ws + 3, s_inbox, k * 1024, sc), tag=("y", k))
        a.i("v_bfe_u32 v%d, v%d, 4, 1" % (vt + 2, vlane))
        a.i("v_bfe_u32 v%d, v%d, 5, 1" % (vt + 3, vlane))
        a.i("v_lshl_add_u32 v%d, v%d, 1, v%d" % (vt + 2, vt + 2, vt + 3))
        a.i("v_and_b32 v%d, 1, v%d" % (vt + 3, vlane))
        a.i("v_lshl_add_u32 v%d, v%d, 2, v%d" % (vt + 2, vt + 3, vt + 2))
        a.i("v_lshlrev_b32 v%d, 1, v%d" % (vt + 2, vt + 2))
        a.wait_vm(("ml", 3))
        def anymark(base, dst):
            a.i("v_max3_u32 v%d, v%d, v%d, v%d" % (dst, base, base + 1, base + 2))
            for k in range(3, 15, 2):
                a.i("v_max3_u32 v%d, v%d, v%d, v%d" % (dst, dst, base + k, base + k + 1))
            a.i("v_max_u32 v%d, v%d, v%d" % (dst, dst, base + 15))
            a.i("v_cmp_eq_u32 vcc, -1, v%d" % dst)
        if poll:
            anymark(vml, vt + 4)
            a.i("s_cbranch_vccz L_pml_ok")
            a.i("s_sub_u32 s%d, s%d, 1" % (s_spin, s_spin))
            a.i("s_cbranch_scc1 L_pml_ok")
            a.i("s_waitcnt vmcnt(0)")
            a.i("s_sleep %d" % sleep)
            a.i("s_branch L_pml")
            a.label("L_pml_ok")
        R4 = range(4)
        for k in R4: a.i("v_max_f32 v%d, v%d, v%d" % (vf + k, vml + 4 * k, vml + 4 * k + 2))
        for k in R4:
            b = vml + 4 * k
            a.i("v_sub_f32 v%d, v%d, v%d" % (b, b, vf + k))
            a.i("v_sub_f32 v%d, v%d, v%d" % (b + 2, b + 2, vf + k))
        for k in R4:
            b = vml + 4 * k
            a.i("v_mul_f32 v%d, s%d, v%d" % (b, s_log2e, b))
            a.i("v_mul_f32 v%d, s%d, v%d" % (b + 2, s_log2e, b + 2))
        for k in R4:
            b = vml + 4 * k
            a.i("v_exp_f32 v%d, v%d" % (b, b))
            a.i("v_exp_f32 v%d, v%d" % (b + 2, b + 2))
        for k in R4:
            b = vml + 4 * k
            a.i("v_mul_f32 v%d, v%d, v%d" % (b + 1, b, b + 1))
            a.i("v_fmac_f32 v%d, v%d, v%d" % (b + 1, b + 2, b + 3))
        for k in R4:
            b = vml + 4 * k
            a.i("v_rcp_f32 v%d, v%d" % (b + 1, b + 1))
            a.i("v_cndmask_b32 v%d, v%d, v%d, s[%d:%d]" % (b, b, b + 2, s_m2, s_m2 + 1))
        for k in R4:
            b = vml + 4 * k
            a.i("v_mul_f32 v%d, v%d, v%d" % (vf + k, b, b + 1))
        if poll:
            a.label("L_py")
            a.wait_vm(("y", 3))
            anymark(vy, vt + 4)
            a.i("s_cbranch_vccz L_py_ok")
            a.i("s_sub_u32 s%d, s%d, 1" % (s_spin, s_spin))
            a.i("s_cbranch_scc1 L_py_ok")
            if sleep: a.i("s_sleep %d" % sleep)
            for k in range(4):
                a.i("buffer_load_dwordx4 %s, v%d, s[%d:%d], s%d offen offset:%d%s" % (vr(vy + 4 * k), vt, srd_ws, srd_ws + 3, s_inbox, k * 1024, sc))
            a.vm = []
            a.i("s_branch L_py")
            a.label("L_py_ok")
        for k in R4:
            a.wait_vm(("y", k))
            for t in range(4):
                if k == 0: a.i("v_mul_f32 v%d, v%d, v%d" % (vacc + t, vf, vy + t))
                else: a.i("v_fmac_f32 v%d, v%d, v%d" % (vacc + t, vf + k, vy + 4 * k + t))
        a.i("v_permlane32_swap_b32 v%d, v%d" % (vacc, vacc + 1))
        a.i("v_permlane32_swap_b32 v%d, v%d" % (vacc + 2, vacc + 3))
        a.i("v_add_f32 v%d, v%d, v%d" % (vacc, vacc, vacc + 1))
        a.i("v_add_f32 v%d, v%d, v%d" % (vacc + 2, vacc + 2, vacc + 3))
        a.i("v_permlane16_swap_b32 v%d, v%d" % (vacc, vacc + 2))
        a.i("v_add_f32 v%d, v%d, v%d" % (vacc, vacc, vacc + 2))
        a.i("v_add_f32_dpp v%d, v%d, v%d quad_perm:[2,3,0,1] row_mask:0xf bank_mask:0xf" % (vacc, vacc, vacc))
        a.i("v_add_f32_dpp v%d, v%d, v%d row_ror:4 row_mask:0xf bank_mask:0xf" % (vacc, vacc, vacc))
        a.i("v_add_f32_dpp v%d, v%d, v%d row_ror:8 row_mask:0xf bank_mask:0xf" % (vacc, vacc, vacc))
        a.i("v_cvt_pk_bf16_f32 v%d, v%d, v%d" % (vacc, vacc, vacc))
        a.i("s_mov_b32 exec_lo, 0x00030003")
        a.i("s_mov_b32 exec_hi, 0x00030003")
        a.i("buffer_store_short v%d, v%d, s[%d:%d], s%d offen" % (vacc, vt + 2, srd_out, srd_out + 3, s_outoff))
    if fused:
        a.vm = []
        a.i("s_nop 7")
        consumer(a, SWS, SOUT, s_inbox, s_mlrd, s_outoff, s_log2e, s_m2, v_lane, 64, True, s_spin)
    if pad:
        a.i("s_add_u32 s98, s98, %d" % pad)
        a.label("L_pad")
        a.i("s_memrealtime s[100:101]")
        a.i("s_waitcnt lgkmcnt(0)")
        a.i("s_sub_u32 s100, s100, s98")
        a.i("s_cmp_lt_i32 s100, 0")
        a.i("s_cbranch_scc1 L_pad")
    emit_ts()
    a.label("L_end1")
    a.i("s_endpgm")
    k1 = a.text() + kd(kname, 256, 102)
    if fused:
        head = HDR + "; @launch grid=(256,1,1) block=(512,1,1) lds=16384\n"
        head += '.amdgcn_target "amdgcn-amd-amdhsa--gfx950"\n.text\n'
        return head + k1
    a = Asm()
    k2name = "combine_kernel"
    a.raw(".globl %s\n.p2align 8\n.type %s,@function\n%s:" % (k2name, k2name, k2name))
    a.i("s_cmp_ge_u32 s2, 256")
    a.i("s_cbranch_scc1 L_end2")
    a.i("s_load_dwordx2 s[4:5], s[0:1], 80")
    a.i("s_load_dwordx2 s[6:7], s[0:1], 96")
    a.i("s_lshl_b32 s16, s2, 12")
    a.i("s_lshr_b32 s17, s2, 6")
    a.i("s_lshl_b32 s18, s17, 9")
    a.i("s_add_u32 s18, s18, 0x%x" % WS_ML)
    a.i("s_and_b32 s19, s17, 1")
    a.i("s_lshl_b32 s19, s19, 11")
    a.i("s_lshr_b32 s20, s17, 1")
    a.i("s_lshl_b32 s20, s20, 10")
    a.i("s_add_u32 s19, s19, s20")
    a.i("s_and_b32 s20, s2, 63")
    a.i("s_lshl_b32 s20, s20, 4")
    a.i("s_add_u32 s19, s19, s20")
    a.i("s_mov_b32 s21, 0x%x" % LOG2E)
    a.i("s_mov_b32 s22, 0xf0f0f0f0")
    a.i("s_mov_b32 s23, 0xf0f0f0f0")
    a.i("s_waitcnt lgkmcnt(0)")
    srd(a, 8, 6, 7, 0x400000)
    srd(a, 12, 4, 5, 4096)
    consumer(a, 8, 12, 16, 18, 19, 21, 22, 0, 4, False, 24)
    a.label("L_end2")
    a.i("s_endpgm")
    k2 = a.text() + kd(k2name, 56, 32)
    head = HDR + "; @launch kernel=%s grid=(256,1,1) block=(512,1,1) lds=16384\n" % kname
    head += "; @launch kernel=%s grid=(256,1,1) block=(64,1,1) lds=0\n" % k2name
    head += '.amdgcn_target "amdgcn-amd-amdhsa--gfx950"\n.text\n'
    return head + k1 + k2

if __name__ == "__main__":
    out = sys.argv[1]
    kw = {}
    for arg in sys.argv[2:]:
        k, v = arg.split("=")
        kw[k] = int(v, 0)
    open(out, "w").write(gen(**kw))
```

```python
import sys, copy
from asmlib import Asm
from gen1 import NAME, HDR, vr, kd, LOG2E, SCALE

WS_TS = 2 << 20
WS_EX = 1 << 19
WS_EP = (1 << 19) + (1 << 17)

def gen(D=6, ts=0, mapn=1, sleep=2, NSPIN=20000, pad=0, kvnt=1, wnt=1, D0=0, bq=0, bs=0,
        De=0, Xe=0, fine=0, ww=4, kfirst=0, CW=16, exp=0, exi=22, exu=29, prio=0, Ds=0, outw=1, pbar=1, qm=20, q0=0, om=20, o0=32, bk=6):
    WNT = " nt" if wnt else ""
    KVNT = " nt" if kvnt else ""
    a = Asm()
    kname = NAME + "_kernel"
    a.raw(".globl %s\n.p2align 8\n.type %s,@function\n%s:" % (kname, kname, kname))
    SK, SV, SWQ, SWO, SX, SWS, SOUT = 44, 48, 52, 56, 60, 64, 68
    s_br, s_h, s_b, s_half, s_wave = 4, 5, 6, 7, 8
    s_kvbase, s_off, s_wqoff, s_wooff, s_tmp = 9, 10, 11, 12, 13
    s_grp, s_p = 14, 15
    s_m1, s_m0 = 76, 78
    s_log2e, s_scale = 80, 81
    s_rot = 3
    s_kvo = 82
    s_spin = 90
    s_inbox, s_id, s_outoff, s_ex, s_ybase, s_mx, s_tag = 91, 92, 93, 94, 95, 96, 97
    s_ep, s_tagb = 72, 73
    s_epo = 74
    s_ts = 16
    NC = 512 // CW
    IB = 64 * CW * 4
    lgCW = CW.bit_length() - 1
    nst = [0]
    def stamp():
        if not ts: return
        k = nst[0]; nst[0] += 1
        a.i("s_memrealtime s[%d:%d]" % (s_ts + 2 * k, s_ts + 2 * k + 1))
    a.i("s_cmp_ge_u32 s2, 256")
    a.i("s_cbranch_scc1 L_end1")
    a.i("s_load_dwordx16 s[16:31], s[0:1], 0")
    a.i("s_load_dwordx8 s[32:39], s[0:1], 64")
    a.i("s_load_dwordx2 s[40:41], s[0:1], 96")
    if ts or pad: a.i("s_memrealtime s[98:99]")
    if mapn == 1:
        a.i("s_bfe_u32 s%d, s2, 0x10002" % s_br)
        a.i("s_and_b32 s%d, s2, 3" % s_tmp)
        a.i("s_lshl_b32 s%d, s%d, 3" % (s_tmp, s_tmp))
        a.i("s_lshr_b32 s%d, s2, 5" % s_h)
        a.i("s_or_b32 s%d, s%d, s%d" % (s_h, s_h, s_tmp))
    else:
        a.i("s_lshr_b32 s%d, s2, 7" % s_br)
        a.i("s_bfe_u32 s%d, s2, 0x20005" % s_tmp)
        a.i("s_lshl_b32 s%d, s%d, 3" % (s_tmp, s_tmp))
        a.i("s_and_b32 s%d, s2, 7" % s_h)
        a.i("s_or_b32 s%d, s%d, s%d" % (s_h, s_h, s_tmp))
    a.i("s_bfe_u32 s%d, s2, 0x10004" % s_b)
    a.i("s_bfe_u32 s%d, s2, 0x10003" % s_half)
    v_lane, v_kv, v_wq, v_wo, v_x = 1, 2, 3, 4, 5
    v_g, v_c = 6, 7
    v_mask = 8
    v_A = [12, 16]
    v_D = 20
    v_q = 24
    v_s = [28, 29]
    v_t0 = 30
    v_T = 40
    v_ldsD, v_zero, v_y, v_ord, v_ldsY, v_tid4, v_exa, v_f = 56, 57, 58, 59, 60, 61, 62, 63
    v_e = 36
    v_ff = 38
    SLOT0 = 64
    NSLOT = (256 - SLOT0) // 4
    S = {"free": list(range(NSLOT)), "where": {}, "kvo": 1, "issued": 0, "D": D}
    slot = lambda k: SLOT0 + 4 * k
    a.i("v_and_b32 v%d, 63, v0" % v_lane)
    a.i("v_lshrrev_b32 v%d, 6, v0" % v_t0)
    a.i("v_readfirstlane_b32 s%d, v%d" % (s_wave, v_t0))
    a.i("v_lshrrev_b32 v%d, 4, v%d" % (v_g, v_lane))
    a.i("v_and_b32 v%d, 15, v%d" % (v_c, v_lane))
    a.i("s_lshl_b32 s%d, s%d, 26" % (s_kvbase, s_b))
    a.i("s_lshl_b32 s%d, s%d, 21" % (s_tmp, s_h))
    a.i("s_add_u32 s%d, s%d, s%d" % (s_kvbase, s_kvbase, s_tmp))
    a.i("s_lshl_b32 s%d, s%d, 18" % (s_tmp, s_half))
    a.i("s_add_u32 s%d, s%d, s%d" % (s_kvbase, s_kvbase, s_tmp))
    a.i("s_add_u32 s%d, s%d, 0x%x" % (s_kvbase, s_kvbase, 6144 * 256))
    a.i("s_lshl_b32 s%d, s%d, 10" % (s_off, s_b))
    a.i("s_lshl_b32 s%d, s%d, 8" % (s_wqoff, s_h))
    a.i("v_and_b32 v%d, 0x1c0, v0" % v_wq)
    a.i("v_add_u32 v%d, v%d, v%d" % (v_wq, v_wq, v_g))
    a.i("v_lshl_add_u32 v%d, v%d, 2, v%d" % (v_x, v_c, v_wq))
    a.i("v_lshlrev_b32 v%d, 1, v%d" % (v_x, v_x))
    a.i("v_lshlrev_b32 v%d, 13, v%d" % (v_wq, v_wq))
    a.i("v_lshl_add_u32 v%d, v%d, 4, v%d" % (v_wq, v_c, v_wq))
    a.i("v_lshlrev_b32 v%d, 15, v%d" % (v_kv, v_t0))
    a.i("v_lshl_add_u32 v%d, v%d, 4, v%d" % (v_kv, v_lane, v_kv))
    a.i("s_lshl_b32 s%d, s2, 3" % s_rot)
    a.i("s_add_u32 s%d, s%d, s%d" % (s_rot, s_rot, s_wave))
    a.i("s_add_u32 s%d, s%d, 1" % (s_rot, s_rot))
    a.i("s_mul_i32 s%d, s%d, 0x9e3779b1" % (s_rot, s_rot))
    a.i("s_lshr_b32 s%d, s%d, 15" % (s_tmp, s_rot))
    a.i("s_xor_b32 s%d, s%d, s%d" % (s_rot, s_rot, s_tmp))
    a.i("s_mul_i32 s%d, s%d, 0x85ebca6b" % (s_rot, s_rot))
    a.i("s_lshr_b32 s%d, s%d, 13" % (s_rot, s_rot))
    a.i("s_and_b32 s%d, s%d, 0x7000" % (s_kvo, s_rot))
    a.i("s_add_u32 s%d, s%d, s%d" % (s_kvo, s_kvo, s_kvbase))
    for (r, sz) in ((SX, 2048), (SWQ, 0x400000), (SK, 0x8000000), (SV, 0x8000000), (SWO, 0x400000), (SWS, 0x400000), (SOUT, 4096)):
        a.i("s_mov_b32 s%d, 0x%x" % (r + 2, sz))
        a.i("s_mov_b32 s%d, 0x20000" % (r + 3))
    a.i("s_lshl_b32 s%d, s%d, 1" % (s_grp, s_br))
    a.i("s_or_b32 s%d, s%d, s%d" % (s_grp, s_grp, s_b))
    a.i("s_lshl_b32 s%d, s%d, 8" % (s_epo, s_grp))
    a.i("s_add_u32 s%d, s%d, 0x%x" % (s_epo, s_epo, WS_EP))
    a.i("s_cmp_eq_u32 s%d, 0" % s_br)
    a.i("s_waitcnt lgkmcnt(0)")
    if ts: a.i("s_memrealtime s[100:101]")
    def sel(r, A, B):
        a.i("s_cselect_b32 s%d, s%d, s%d" % (r, A, B))
        a.i("s_cselect_b32 s%d, s%d, s%d" % (r + 1, A + 1, B + 1))
    sel(SX, 16, 26)
    sel(SWQ, 22, 32)
    sel(SK, 18, 28)
    a.i("buffer_load_ushort v%d, v%d, s[%d:%d], s%d offen" % (v_x, v_x, SX, SX + 3, s_off), tag="x")
    sel(SV, 20, 30)
    sel(SWO, 24, 34)
    def load(key):
        kind, i = key
        if kind == "ex":
            a.i("buffer_load_dwordx2 v[%d:%d], v%d, s[%d:%d], s%d offen sc1" % (v_e, v_e + 1, v_exa, SWS, SWS + 3, s_ex), tag=key)
            return
        k = S["free"].pop(0); S["where"][key] = k
        if kind == "wq":
            if i > 0: a.i("s_add_u32 s%d, s%d, 32768" % (s_wqoff, s_wqoff))
            a.i("buffer_load_dwordx4 %s, v%d, s[%d:%d], s%d offen%s" % (vr(slot(k)), v_wq, SWQ, SWQ + 3, s_wqoff, WNT), tag=key)
        elif kind == "wo":
            if i > 0 and i % 4 == 0: a.i("s_add_u32 s%d, s%d, 4096" % (s_wooff, s_wooff))
            a.i("buffer_load_dwordx4 %s, v%d, s[%d:%d], s%d offen offset:%d%s" % (vr(slot(k)), v_wo, SWO, SWO + 3, s_wooff, (i % 4) * 256, WNT), tag=key)
        else:
            j = i // 4
            if j >= S["kvo"]:
                a.i("s_add_u32 s%d, s%d, 4096" % (s_rot, s_rot))
                a.i("s_and_b32 s%d, s%d, 0x7000" % (s_kvo + j, s_rot))
                a.i("s_add_u32 s%d, s%d, s%d" % (s_kvo + j, s_kvo + j, s_kvbase))
                S["kvo"] = j + 1
            r = SK if kind == "k" else SV
            a.i("buffer_load_dwordx4 %s, v%d, s[%d:%d], s%d offen offset:%d%s" % (vr(slot(k)), v_kv, r, r + 3, s_kvo + j, (i % 4) * 1024, KVNT), tag=key)
    KV = [("k", i) for i in range(32)] + [("v", i) for i in range(32)]
    before = {}
    for i in range(16):
        before.setdefault(q0 + i * qm // 10, []).append(("wq", i))
        before.setdefault(o0 + i * om // 10, []).append(("wo", i))
    before.setdefault(32 + exi, []).append(("ex", 0))
    assert max(before) <= 63
    L = []
    for n, k in enumerate(KV):
        L += before.get(n, []); L.append(k)
    idx = {k: n for n, k in enumerate(L)}
    def issue_upto(n):
        while S["issued"] <= min(n, len(L) - 1) and S["free"]:
            load(L[S["issued"]]); S["issued"] += 1
    S["pos"] = 0
    def step():
        key = L[S["pos"]]
        assert S["pos"] < S["issued"], key
        a.wait_vm(key)
        S["pos"] += 1
    def refill():
        issue_upto(reach(S["pos"] - 1, win(S["pos"] - 1)))
    def need(key):
        while S["pos"] <= idx[key]:
            step()
            if S["pos"] <= idx[key]: refill()
    cum = [0]
    for k in L: cum.append(cum[-1] + (ww if k[0] in ("wq", "wo") else 0 if k[0] == "ex" else 4))
    def reach(n, d):
        m = n
        while m + 1 < len(L) and cum[m + 2] - cum[n + 1] <= 4 * d: m += 1
        return m
    def win(n):
        if De and n >= len(L) - Xe: return De
        return S["D"]
    def done(key):
        S["free"].append(S["where"].pop(key))
        refill()
    issue_upto(1)
    a.i("s_load_dword s%d, s[40:41], s%d" % (s_ep, s_epo))
    for (r, A) in ((SWS, 40), (SOUT, 36)):
        a.i("s_mov_b32 s%d, s%d" % (r, A)); a.i("s_mov_b32 s%d, s%d" % (r + 1, A + 1))
    issue_upto(reach(-1, D0 or D))
    if fine: stamp()
    a.i("s_lshl_b32 s%d, s%d, 1" % (s_p, s_h))
    a.i("s_or_b32 s%d, s%d, s%d" % (s_p, s_p, s_half))
    a.i("s_lshl_b32 s%d, s%d, 6" % (s_id, s_grp))
    a.i("s_add_u32 s%d, s%d, s%d" % (s_id, s_id, s_p))
    a.i("s_lshl_b32 s%d, s%d, 17" % (s_ybase, s_grp))
    a.i("s_lshl_b32 s%d, s%d, 11" % (s_inbox, s_p))
    a.i("s_add_u32 s%d, s%d, s%d" % (s_inbox, s_inbox, s_ybase))
    a.i("s_lshl_b32 s%d, s%d, %d" % (s_tmp, s_p, lgCW + 2))
    a.i("s_add_u32 s%d, s%d, s%d" % (s_ybase, s_ybase, s_tmp))
    a.i("v_lshlrev_b32 v%d, 2, v0" % v_tid4)
    a.i("v_lshrrev_b32 v%d, %d, v0" % (v_y, lgCW))
    a.i("v_lshlrev_b32 v%d, %d, v%d" % (v_y, lgCW + 8, v_y))
    a.i("v_and_b32 v%d, %d, v%d" % (v_t0 + 1, CW * 4 - 1, v_tid4))
    a.i("v_add_u32 v%d, v%d, v%d" % (v_y, v_y, v_t0 + 1))
    a.i("s_lshr_b32 s%d, s%d, 1" % (s_ex, s_id))
    a.i("s_lshl_b32 s%d, s%d, 10" % (s_ex, s_ex))
    a.i("s_add_u32 s%d, s%d, 0x%x" % (s_ex, s_ex, WS_EX))
    a.i("v_lshlrev_b32 v%d, 6, v%d" % (v_exa, v_c))
    a.i("s_lshl_b32 s%d, s%d, 3" % (s_tmp, s_half))
    a.i("s_add_u32 s%d, s%d, s%d" % (s_tmp, s_tmp, s_wave))
    a.i("s_lshl_b32 s%d, s%d, 6" % (s_tmp, s_tmp))
    a.i("v_mov_b32 v%d, s%d" % (v_f, s_tmp))
    a.i("v_mov_b32 v%d, 0" % v_zero)
    a.i("v_mov_b32 v%d, 0xffffff00" % v_ff)
    a.i("s_lshl_b32 s%d, s%d, 17" % (s_wooff, s_h))
    a.i("v_lshl_add_u32 v%d, v%d, 4, v%d" % (v_ord, v_t0, v_g))
    a.i("v_lshlrev_b32 v%d, 10, v%d" % (v_wo, v_ord))
    a.i("v_lshl_add_u32 v%d, v%d, 4, v%d" % (v_wo, v_c, v_wo))
    a.i("v_and_b32 v%d, 3, v%d" % (v_t0 + 1, v_c))
    a.i("v_lshl_add_u32 v%d, v%d, 2, v%d" % (v_ord, v_t0 + 1, v_ord))
    a.i("v_lshlrev_b32 v%d, 2, v%d" % (v_ord, v_ord))
    a.i("v_add_u32 v%d, 0x2000, v%d" % (v_ord, v_ord))
    for (r, val) in ((s_m1, 0xcccccccc), (s_m0, 0xaaaaaaaa)):
        a.i("s_mov_b32 s%d, 0x%x" % (r, val)); a.i("s_mov_b32 s%d, 0x%x" % (r + 1, val))
    a.i("s_mov_b32 s%d, 0x%x" % (s_log2e, LOG2E))
    a.i("s_mov_b32 s%d, 0x%x" % (s_scale, SCALE))
    a.i("v_mov_b32 v%d, 0xffff" % (v_t0 + 2))
    a.i("v_mov_b32 v%d, 0xffff0000" % (v_t0 + 3))
    a.i("v_cndmask_b32 v%d, v%d, v%d, s[%d:%d]" % (v_t0 + 2, v_t0 + 2, v_t0 + 3, s_m0, s_m0 + 1))
    a.i("v_bfe_u32 v%d, v0, 1, 2" % (v_t0 + 3))
    for t in range(4):
        a.i("v_cmp_eq_u32 vcc, %d, v%d" % (t, v_t0 + 3))
        a.i("v_cndmask_b32 v%d, 0, v%d, vcc" % (v_mask + t, v_t0 + 2))
    a.i("v_and_b32 v%d, 1, v%d" % (v_t0 + 3, v_g))
    a.i("v_lshlrev_b32 v%d, 4, v%d" % (v_t0 + 3, v_t0 + 3))
    a.i("v_lshl_add_u32 v%d, v%d, 5, v%d" % (v_t0 + 3, v_c, v_t0 + 3))
    a.i("v_lshl_add_u32 v%d, v%d, 9, v%d" % (v_ldsD, v_t0, v_t0 + 3))
    a.i("v_lshl_add_u32 v%d, v%d, 11, v%d" % (v_ldsY, v_t0, v_t0 + 3))
    a.i("s_lshl_b32 s%d, s%d, 11" % (s_outoff, s_b))
    a.i("s_lshl_b32 s%d, s%d, 10" % (s_tmp, s_br))
    a.i("s_add_u32 s%d, s%d, s%d" % (s_outoff, s_outoff, s_tmp))
    a.i("s_lshl_b32 s%d, s%d, 4" % (s_tmp, s_p))
    a.i("s_add_u32 s%d, s%d, s%d" % (s_outoff, s_outoff, s_tmp))
    if prio:
        a.i("s_cmp_lt_u32 s%d, 4" % s_wave)
        a.i("s_cbranch_scc1 L_noprio")
        a.i("s_setprio 1")
        a.label("L_noprio")
    def buildA(vec, i, A):
        for t in range(4):
            a.i("v_and_b32_dpp v%d, v%d, v%d row_newbcast:%d row_mask:0xf bank_mask:0xf" % (A + t, vec, v_mask + t, i))
    def gemv_block(vec, keys, first, hook=None):
        buildA(vec, 0, v_A[0])
        for i, key in enumerate(keys):
            if i + 1 < len(keys): buildA(vec, i + 1, v_A[(i + 1) % 2])
            need(key)
            c = "0" if (first and i == 0) else vr(v_D)
            a.i("v_mfma_f32_16x16x32_bf16 %s, %s, %s, %s" % (vr(v_D), vr(v_A[i % 2]), vr(slot(S["where"][key])), c))
            done(key)
            if hook: hook(key)
            if fine and key in (("wq", 0), ("wq", 7), ("v", 0), ("v", 15)): stamp()
    a.wait_vm("x")
    if fine: stamp()
    a.i("v_lshl_or_b32 v%d, v%d, 16, v%d" % (v_x, v_x, v_x))
    gemv_block(v_x, [("wq", i) for i in range(16)], True)
    stamp()
    issue_upto(reach(S["pos"] - 1, D + bq))
    a.i("ds_write_b128 v%d, %s" % (v_ldsD, vr(v_D)))
    a.i("v_lshlrev_b32 v%d, 3, v%d" % (v_t0, v_lane))
    a.i("v_and_b32 v%d, 0x700, v%d" % (v_t0 + 3, v_tid4))
    a.i("v_lshl_add_u32 v%d, v%d, 4, v%d" % (v_t0 + 3, v_c, v_t0 + 3))
    a.i("s_waitcnt lgkmcnt(0)")
    a.i("s_barrier")
    for w in range(8):
        a.i("ds_read_b64 v[%d:%d], v%d offset:%d" % (v_T + 2 * w, v_T + 2 * w + 1, v_t0, w * 512))
    a.i("s_add_u32 s%d, s%d, 1" % (s_tag, s_ep))
    a.i("s_and_b32 s%d, s%d, 0xff" % (s_tagb, s_tag))
    a.i("s_waitcnt lgkmcnt(0)")
    for step in (1, 2, 4):
        for w in range(0, 8, 2 * step):
            a.i("v_add_f32 v%d, v%d, v%d" % (v_T + 2 * w, v_T + 2 * w, v_T + 2 * (w + step)))
            a.i("v_add_f32 v%d, v%d, v%d" % (v_T + 2 * w + 1, v_T + 2 * w + 1, v_T + 2 * (w + step) + 1))
    a.i("v_cvt_pk_bf16_f32 v%d, v%d, v%d" % (v_T, v_T, v_T + 1))
    a.i("ds_write_b32 v%d, v%d offset:4096" % (v_tid4, v_T))
    a.i("s_waitcnt lgkmcnt(0)")
    a.i("ds_read_b128 %s, v%d offset:4096" % (vr(v_q), v_t0 + 3))
    a.i("s_waitcnt lgkmcnt(0)")
    stamp()

    def stream_part(sfx):
        for blk in range(2):
            for i in range(16):
                a.i("v_mov_b32 v%d, 0" % (v_T + i))
            for i in range(16):
                key = ("k", blk * 16 + i)
                need(key)
                for t in range(4):
                    a.i("v_dot2c_f32_bf16 v%d, v%d, v%d" % (v_T + i, slot(S["where"][key]) + t, v_q + t))
                done(key)
                if idx[key] < S["pos"] - 1:
                    S["bk"] = S.get("bk", 0) + 1
                    if S["bk"] % bk == 0 and S["pos"] < S["issued"]:
                        step(); refill()
            T = v_T
            for k in range(8):
                a.i("v_add_f32_dpp v%d, v%d, v%d row_ror:8 row_mask:0xf bank_mask:0x3" % (T + k, T + k, T + k))
            for k in range(8):
                a.i("v_add_f32_dpp v%d, v%d, v%d row_ror:8 row_mask:0xf bank_mask:0xc" % (T + k, T + k + 8, T + k + 8))
            for k in range(4):
                a.i("v_add_f32_dpp v%d, v%d, v%d row_half_mirror row_mask:0xf bank_mask:0x5" % (T + k, T + k, T + k))
            for k in range(4):
                a.i("v_add_f32_dpp v%d, v%d, v%d row_half_mirror row_mask:0xf bank_mask:0xa" % (T + k, T + k + 4, T + k + 4))
            for k in range(4):
                a.i("v_add_f32_dpp v%d, v%d, v%d quad_perm:[2,3,0,1] row_mask:0xf bank_mask:0xf" % (T + k, T + k, T + k))
            for k in range(2):
                a.i("v_cndmask_b32 v%d, v%d, v%d, s[%d:%d]" % (T + k, T + k, T + k + 2, s_m1, s_m1 + 1))
            for k in range(2):
                a.i("v_add_f32_dpp v%d, v%d, v%d quad_perm:[1,0,3,2] row_mask:0xf bank_mask:0xf" % (T + k, T + k, T + k))
            s = v_s[blk]
            a.i("v_cndmask_b32 v%d, v%d, v%d, s[%d:%d]" % (s, T, T + 1, s_m0, s_m0 + 1))
            a.i("v_cvt_pk_bf16_f32 v%d, v%d, v%d" % (s, s, s))
            a.i("v_and_b32 v%d, 0xffff0000, v%d" % (s, s))
            a.i("v_mul_f32 v%d, s%d, v%d" % (s, s_scale, s))
            a.i("v_cvt_pk_bf16_f32 v%d, v%d, v%d" % (s, s, s))
            a.i("v_and_b32 v%d, 0xffff0000, v%d" % (s, s))
        stamp()
        issue_upto(reach(S["pos"] - 1, S["D"] + bs))
        def wave_red(op, r):
            out = []
            for rot in (8, 4, 2, 1):
                out.append("%s_dpp v%d, v%d, v%d row_ror:%d row_mask:0xf bank_mask:0xf" % (op, r, r, r, rot))
            out.append("%s_dpp v%d, v%d, v%d row_bcast:15 row_mask:0xa bank_mask:0xf" % (op, r, r, r))
            out.append("%s_dpp v%d, v%d, v%d row_bcast:31 row_mask:0xc bank_mask:0xf" % (op, r, r, r))
            return out
        m, l = v_t0, v_t0 + 1
        a.i("v_max_f32 v%d, v%d, v%d" % (m, v_s[0], v_s[1]))
        for x in wave_red("v_max_f32", m): a.i(x)
        a.i("v_readlane_b32 s%d, v%d, 63" % (s_mx, m))
        for s in v_s: a.i("v_subrev_f32 v%d, s%d, v%d" % (s, s_mx, s))
        for s in v_s: a.i("v_mul_f32 v%d, s%d, v%d" % (s, s_log2e, s))
        for s in v_s: a.i("v_exp_f32 v%d, v%d" % (s, s))
        a.i("v_add_f32 v%d, v%d, v%d" % (l, v_s[0], v_s[1]))
        for s in v_s: a.i("v_cvt_pk_bf16_f32 v%d, v%d, v%d" % (s, s, s))
        stamp()
        fill = wave_red("v_add_f32", l)
        fill.append("v_or_b32 v%d, s%d, v%d" % (m, s_tagb, m))
        fill.append("v_and_or_b32 v%d, v%d, v%d, s%d" % (l, l, v_ff, s_tagb))
        e0, e1, t1, t2 = v_e, v_e + 1, v_t0 + 2, v_t0 + 3
        def hook(key):
            if fill:
                a.i(fill.pop(0))
                if not fill:
                    a.i("s_mov_b32 exec_lo, 0")
                    a.i("s_mov_b32 exec_hi, 0x80000000")
                    a.i("buffer_store_dwordx2 v[%d:%d], v%d, s[%d:%d], s%d offen sc1" % (m, l, v_f, SWS, SWS + 3, s_ex), tag="exst")
                    a.i("s_mov_b64 exec, -1")
            if key == ("v", exu):
                assert ("ex", 0) not in a.vm and idx[("ex", 0)] < S["issued"]
                a.i("s_mov_b32 s%d, %d" % (s_spin, NSPIN))
                a.label("L_ex" + sfx)
                a.i("v_xor_b32 v%d, s%d, v%d" % (t1, s_tagb, e0))
                a.i("v_bitop3_b32 v%d, v%d, s%d, v%d bitop3:0xf6" % (t1, t1, s_tagb, e1))
                a.i("v_and_b32 v%d, 0xff, v%d" % (t1, t1))
                a.i("v_cmp_ne_u32 vcc, 0, v%d" % t1)
                a.i("s_cbranch_vccz L_ex_ok" + sfx)
                a.i("s_sub_u32 s%d, s%d, 1" % (s_spin, s_spin))
                a.i("s_cbranch_scc1 L_ex_ok" + sfx)
                a.i("s_sleep 4")
                a.i("buffer_load_dwordx2 v[%d:%d], v%d, s[%d:%d], s%d offen sc1" % (v_e, v_e + 1, v_exa, SWS, SWS + 3, s_ex))
                a.vm.pop()
                a.i("s_waitcnt vmcnt(0)")
                a.i("s_branch L_ex" + sfx)
                a.label("L_ex_ok" + sfx)
                a.i("v_and_b32 v%d, 0xffff0000, v%d" % (e0, e0))
                a.i("v_max_f32_dpp v%d, v%d, v%d row_ror:8 row_mask:0xf bank_mask:0xf" % (t1, e0, e0))
                for rot in (4, 2, 1):
                    a.i("v_max_f32_dpp v%d, v%d, v%d row_ror:%d row_mask:0xf bank_mask:0xf" % (t1, t1, t1, rot))
                a.i("v_sub_f32 v%d, v%d, v%d" % (e0, e0, t1))
                a.i("v_sub_f32 v%d, s%d, v%d" % (t2, s_mx, t1))
                a.i("v_mul_f32 v%d, s%d, v%d" % (e0, s_log2e, e0))
                a.i("v_mul_f32 v%d, s%d, v%d" % (t2, s_log2e, t2))
                a.i("v_exp_f32 v%d, v%d" % (e0, e0))
                a.i("v_exp_f32 v%d, v%d" % (t2, t2))
                a.i("v_mul_f32 v%d, v%d, v%d" % (e0, e0, e1))
                for rot in (8, 4, 2, 1):
                    a.i("v_add_f32_dpp v%d, v%d, v%d row_ror:%d row_mask:0xf bank_mask:0xf" % (e0, e0, e0, rot))
                a.i("v_rcp_f32 v%d, v%d" % (e0, e0))
                a.i("v_mul_f32 v%d, v%d, v%d" % (v_f, t2, e0))
        gemv_block(v_s[0], [("v", i) for i in range(16)], True, hook)
        assert not fill
        gemv_block(v_s[1], [("v", i) for i in range(16, 32)], False, hook)
        stamp()
        for t in range(4): a.i("v_mul_f32 v%d, v%d, v%d" % (v_D + t, v_f, v_D + t))
        a.i("ds_write_b128 v%d, %s offset:8192" % (v_ldsD, vr(v_D)))
        a.i("s_waitcnt lgkmcnt(0)")
        a.i("s_barrier")
        for w in range(0, 8, 2):
            a.i("ds_read2st64_b32 v[%d:%d], v%d offset0:%d offset1:%d" % (v_T + w, v_T + w + 1, v_ord, 2 * w, 2 * w + 2))
        a.i("s_waitcnt lgkmcnt(0)")
        for step in (1, 2, 4):
            for w in range(0, 8, 2 * step):
                a.i("v_add_f32 v%d, v%d, v%d" % (v_T + w, v_T + w, v_T + w + step))
        v_o = v_s[0]
        a.i("v_cvt_pk_bf16_f32 v%d, v%d, v%d" % (v_o, v_T, v_T))
        buildA(v_o, 0, v_A[0])
        for ip in range(4):
            for cb in range(4):
                c = "0" if ip == 0 else vr(v_T + 4 * cb)
                a.i("v_mfma_f32_16x16x32_bf16 %s, %s, %s, %s" % (vr(v_T + 4 * cb), vr(v_A[ip % 2]), vr(slot(S["where"][("wo", 4 * ip + cb)])), c))
                if cb == 0 and ip < 3: buildA(v_o, ip + 1, v_A[(ip + 1) % 2])
        a.i("s_mov_b32 exec_hi, 0")
        for cb in range(4):
            a.i("ds_write_b128 v%d, %s offset:%d" % (v_ldsY, vr(v_T + 4 * cb), 16384 + cb * 512))
        a.i("s_mov_b32 exec_hi, -1")
        a.i("s_waitcnt lgkmcnt(0)")
        a.i("s_barrier")
    if Ds:
        a.i("s_lshr_b32 s%d, s%d, 8" % (s_tmp, SWQ))
        a.i("s_add_u32 s%d, s%d, s%d" % (s_tmp, s_tmp, s_h))
        a.i("s_and_b32 s%d, s%d, 3" % (s_tmp, s_tmp))
        a.i("s_cmp_eq_u32 s%d, 1" % s_tmp)
        a.i("s_cbranch_scc1 L_slow")
        S0 = copy.deepcopy(S); vm0 = list(a.vm); n0 = nst[0]
        stream_part("_a")
        a.i("s_branch L_join")
        a.label("L_slow")
        a.i("s_nop 7")
        S.clear(); S.update(S0); a.vm = vm0; nst[0] = n0
        S["D"] = Ds
        stream_part("_b")
        a.label("L_join")
    else:
        stream_part("_a")
    for w in range(0, 8, 2):
        a.i("ds_read2st64_b32 v[%d:%d], v%d offset0:%d offset1:%d" % (v_T + w, v_T + w + 1, v_tid4, 64 + 8 * w, 64 + 8 * w + 8))
    a.i("s_waitcnt lgkmcnt(0)")
    for step in (1, 2, 4):
        for w in range(0, 8, 2 * step):
            a.i("v_add_f32 v%d, v%d, v%d" % (v_T + w, v_T + w, v_T + w + step))
    a.i("v_and_or_b32 v%d, v%d, v%d, s%d" % (v_T, v_T, v_ff, s_tagb))
    a.i("buffer_store_dword v%d, v%d, s[%d:%d], s%d offen sc1" % (v_T, v_y, SWS, SWS + 3, s_ybase), tag="y")
    stamp()
    END = "L_ts" if ts else "L_end1"
    if exp:
        a.i("s_waitcnt vmcnt(0)")
        a.i("s_branch L_ts")
    if NC < 64:
        a.i("s_and_b32 s%d, s%d, %d" % (s_tmp, s_p, 64 // NC - 1))
        a.i("s_cbranch_scc1 %s" % END)
    if pbar: a.i("s_barrier")
    a.i("s_cmp_lg_u32 s%d, 0" % s_wave)
    a.i("s_cbranch_scc1 %s" % END)
    a.vm = []
    NL = CW // 4
    vy, vt = 64, 128
    Q = CW // 4
    a.i("v_lshlrev_b32 v%d, 4, v%d" % (vt, v_lane))
    a.i("v_add_u32 v%d, 0x1000, v%d" % (vt + 1, vt))
    a.i("s_mov_b32 s%d, %d" % (s_spin, NSPIN))
    a.i("v_bfe_u32 v%d, v%d, 4, 1" % (vt + 2, v_lane))
    a.i("v_bfe_u32 v%d, v%d, 5, 1" % (vt + 3, v_lane))
    a.i("v_lshl_add_u32 v%d, v%d, 1, v%d" % (vt + 2, vt + 2, vt + 3))
    a.i("v_and_b32 v%d, %d, v%d" % (vt + 3, Q - 1, v_lane))
    a.i("v_lshl_add_u32 v%d, v%d, 2, v%d" % (vt + 2, vt + 3, vt + 2))
    a.i("v_lshlrev_b32 v%d, 1, v%d" % (vt + 2, vt + 2))
    if outw:
        a.i("buffer_load_ushort v%d, v%d, s[%d:%d], s%d offen" % (vt + 5, vt + 2, SOUT, SOUT + 3, s_outoff))
        a.vm = []
    a.label("L_poll")
    for k in range(NL):
        a.i("buffer_load_dwordx4 %s, v%d, s[%d:%d], s%d offen offset:%d sc1" % (vr(vy + 4 * k), vt + (k >> 2), SWS, SWS + 3, s_inbox, (k & 3) * 1024), tag=("y", k))
    chk = vt + 4
    for k in range(NL):
        a.wait_vm(("y", k))
        for t in range(4):
            if k == 0 and t == 0: a.i("v_xor_b32 v%d, s%d, v%d" % (chk, s_tagb, vy))
            else: a.i("v_bitop3_b32 v%d, v%d, s%d, v%d bitop3:0xf6" % (chk, chk, s_tagb, vy + 4 * k + t))
        if k > 0:
            for t in range(4):
                a.i("v_add_f32 v%d, v%d, v%d" % (vy + t, vy + t, vy + 4 * k + t))
    a.i("v_and_b32 v%d, 0xff, v%d" % (chk, chk))
    a.i("v_cmp_ne_u32 vcc, 0, v%d" % chk)
    a.i("s_cbranch_vccz L_poll_ok")
    a.i("s_sub_u32 s%d, s%d, 1" % (s_spin, s_spin))
    a.i("s_cbranch_scc1 L_poll_ok")
    if sleep: a.i("s_sleep %d" % sleep)
    a.i("s_branch L_poll")
    a.label("L_poll_ok")
    vacc = vy
    a.i("v_permlane32_swap_b32 v%d, v%d" % (vacc, vacc + 1))
    a.i("v_permlane32_swap_b32 v%d, v%d" % (vacc + 2, vacc + 3))
    a.i("v_add_f32 v%d, v%d, v%d" % (vacc, vacc, vacc + 1))
    a.i("v_add_f32 v%d, v%d, v%d" % (vacc + 2, vacc + 2, vacc + 3))
    a.i("v_permlane16_swap_b32 v%d, v%d" % (vacc, vacc + 2))
    a.i("v_add_f32 v%d, v%d, v%d" % (vacc, vacc, vacc + 2))
    if Q <= 2: a.i("v_add_f32_dpp v%d, v%d, v%d quad_perm:[2,3,0,1] row_mask:0xf bank_mask:0xf" % (vacc, vacc, vacc))
    if Q <= 4: a.i("v_add_f32_dpp v%d, v%d, v%d row_ror:4 row_mask:0xf bank_mask:0xf" % (vacc, vacc, vacc))
    a.i("v_add_f32_dpp v%d, v%d, v%d row_ror:8 row_mask:0xf bank_mask:0xf" % (vacc, vacc, vacc))
    a.i("v_cvt_pk_bf16_f32 v%d, v%d, v%d" % (vacc, vacc, vacc))
    em = ((1 << Q) - 1) * 0x00010001
    a.i("s_mov_b32 exec_lo, 0x%08x" % em)
    a.i("s_mov_b32 exec_hi, 0x%08x" % em)
    a.i("buffer_store_short v%d, v%d, s[%d:%d], s%d offen" % (vacc, vt + 2, SOUT, SOUT + 3, s_outoff))
    a.i("s_cmp_lg_u32 s%d, 0" % s_p)
    a.i("s_cbranch_scc1 L_noep")
    a.i("s_mov_b64 exec, 1")
    a.i("v_mov_b32 v%d, s%d" % (vt + 4, s_tag))
    a.i("buffer_store_dword v%d, v%d, s[%d:%d], s%d offen" % (vt + 4, v_zero, SWS, SWS + 3, s_epo))
    a.label("L_noep")
    if pad:
        a.i("s_add_u32 s98, s98, %d" % pad)
        a.label("L_pad")
        a.i("s_memrealtime s[100:101]")
        a.i("s_waitcnt lgkmcnt(0)")
        a.i("s_sub_u32 s100, s100, s98")
        a.i("s_cmp_lt_i32 s100, 0")
        a.i("s_cbranch_scc1 L_pad")
    if ts:
        a.label("L_ts")
        a.i("s_nop 7")
        stamp()
        a.i("s_waitcnt lgkmcnt(0)")
        a.i("s_mov_b64 exec, 1")
        a.i("s_lshl_b32 s%d, s2, 3" % s_off)
        a.i("s_add_u32 s%d, s%d, s%d" % (s_off, s_off, s_wave))
        a.i("s_lshl_b32 s%d, s%d, 6" % (s_off, s_off))
        a.i("s_add_u32 s%d, s%d, 0x%x" % (s_off, s_off, WS_TS))
        a.i("v_mov_b32 v%d, s98" % (v_T))
        a.i("v_mov_b32 v%d, s100" % (v_T + 1))
        assert nst[0] <= 13
        print("stamps:", nst[0] + 2)
        for k in range(nst[0]):
            a.i("v_mov_b32 v%d, s%d" % (v_T + 2 + k, s_ts + 2 * k))
        a.i("s_getreg_b32 s%d, hwreg(HW_REG_XCC_ID)" % s_tmp)
        a.i("s_lshl_b32 s%d, s%d, 16" % (s_tmp, s_tmp))
        a.i("s_add_u32 s%d, s%d, s%d" % (s_tmp, s_tmp, s_id))
        a.i("v_mov_b32 v%d, s%d" % (v_T + 15, s_tmp))
        for k in range(4):
            a.i("buffer_store_dwordx4 %s, v%d, s[%d:%d], s%d offen offset:%d" % (vr(v_T + 4 * k), v_zero, SWS, SWS + 3, s_off, 16 * k))
    a.label("L_end1")
    a.i("s_endpgm")
    k1 = a.text() + kd(kname, 256, 102)
    head = HDR + "; @launch grid=(256,1,1) block=(512,1,1) lds=32768\n"
    head += '.amdgcn_target "amdgcn-amd-amdhsa--gfx950"\n.text\n'
    return head + k1

if __name__ == "__main__":
    out = sys.argv[1]
    kw = {}
    for arg in sys.argv[2:]:
        k, v = arg.split("=")
        kw[k] = int(v, 0)
    open(out, "w").write(gen(**kw))
```

```python
import sys, copy
from asmlib import Asm
from gen1 import NAME, HDR, vr, kd, LOG2E, SCALE

WS_TS = 2 << 20
WS_EX = 1 << 19
WS_EP = (1 << 19) + (1 << 17)

def gen(D=6, ts=0, mapn=1, sleep=2, NSPIN=20000, pad=0, kvnt=1, wnt=1, D0=0, bq=0, bs=0,
        De=0, Xe=0, fine=0, ww=4, kfirst=0, CW=16, exp=0, exi=22, exu=29, prio=0, Ds=0, outw=1, pbar=1, qm=10, q0=0, om=10, o0=32, bk=6, od=0, smode=0, Df=5, f0=0, f1=200, tf=0, nt=1, pm=0, osc=0, exm=0, exo=0, pcap=3, pth=16, psl=6, nacc=1, nA=2, t16=1):
    WNT = " nt" if wnt else ""
    KVNT = " nt" if kvnt else ""
    a = Asm()
    kname = NAME + "_kernel"
    a.raw(".globl %s\n.p2align 8\n.type %s,@function\n%s:" % (kname, kname, kname))
    SK, SV, SWQ, SWO, SX, SWS, SOUT = 44, 48, 52, 56, 60, 64, 68
    s_br, s_h, s_b, s_half, s_wave = 4, 5, 6, 7, 8
    s_kvbase, s_off, s_wqoff, s_wooff, s_tmp = 9, 10, 11, 12, 13
    s_grp, s_p = 14, 15
    s_m1, s_m0 = 76, 78
    s_log2e, s_scale = 80, 81
    s_rot = 3
    s_kvo = 82
    s_spin = 90
    s_inbox, s_id, s_outoff, s_ex, s_ybase, s_mx, s_tag = 91, 92, 93, 94, 95, 96, 97
    s_ep, s_tagb = 72, 73
    s_epo = 74
    s_t16 = 75 if t16 else s_tagb
    s_mh = 42
    s_ts = 16
    NC = 512 // CW
    IB = 64 * CW * 4
    lgCW = CW.bit_length() - 1
    nst = [0]
    def stamp():
        if not ts: return
        k = nst[0]; nst[0] += 1
        a.i("s_memrealtime s[%d:%d]" % (s_ts + 2 * k, s_ts + 2 * k + 1))
    a.i("s_cmp_ge_u32 s2, 256")
    a.i("s_cbranch_scc1 L_end1")
    a.i("s_load_dwordx16 s[16:31], s[0:1], 0")
    a.i("s_load_dwordx8 s[32:39], s[0:1], 64")
    a.i("s_load_dwordx2 s[40:41], s[0:1], 96")
    if ts or pad: a.i("s_memrealtime s[98:99]")
    if mapn == 1:
        a.i("s_bfe_u32 s%d, s2, 0x10002" % s_br)
        a.i("s_and_b32 s%d, s2, 3" % s_tmp)
        a.i("s_lshl_b32 s%d, s%d, 3" % (s_tmp, s_tmp))
        a.i("s_lshr_b32 s%d, s2, 5" % s_h)
        a.i("s_or_b32 s%d, s%d, s%d" % (s_h, s_h, s_tmp))
    else:
        a.i("s_lshr_b32 s%d, s2, 7" % s_br)
        a.i("s_bfe_u32 s%d, s2, 0x20005" % s_tmp)
        a.i("s_lshl_b32 s%d, s%d, 3" % (s_tmp, s_tmp))
        a.i("s_and_b32 s%d, s2, 7" % s_h)
        a.i("s_or_b32 s%d, s%d, s%d" % (s_h, s_h, s_tmp))
    a.i("s_bfe_u32 s%d, s2, 0x10004" % s_b)
    a.i("s_bfe_u32 s%d, s2, 0x10003" % s_half)
    v_lane, v_kv, v_wq, v_wo, v_x = 1, 2, 3, 4, 5
    v_g, v_c = 6, 7
    v_mask = 8
    v_A = [12, 16]
    v_D = 20
    v_q = 24
    v_s = [28, 29]
    v_t0 = 30
    v_T = 40
    v_ldsD, v_zero, v_y, v_ord, v_ldsY, v_tid4, v_exa, v_f = 56, 57, 58, 59, 60, 61, 62, 63
    v_e = 36
    v_ff = 38
    v_stw, v_str = 34, 35
    SLOT0 = 64
    NSLOT = (256 - SLOT0) // 4
    S = {"free": list(range(NSLOT)), "where": {}, "kvo": 1, "issued": 0, "D": D}
    slot = lambda k: SLOT0 + 4 * k
    a.i("v_and_b32 v%d, 63, v0" % v_lane)
    a.i("v_lshrrev_b32 v%d, 6, v0" % v_t0)
    a.i("v_readfirstlane_b32 s%d, v%d" % (s_wave, v_t0))
    a.i("v_lshrrev_b32 v%d, 4, v%d" % (v_g, v_lane))
    a.i("v_and_b32 v%d, 15, v%d" % (v_c, v_lane))
    a.i("s_lshl_b32 s%d, s%d, 26" % (s_kvbase, s_b))
    a.i("s_lshl_b32 s%d, s%d, 21" % (s_tmp, s_h))
    a.i("s_add_u32 s%d, s%d, s%d" % (s_kvbase, s_kvbase, s_tmp))
    a.i("s_lshl_b32 s%d, s%d, 18" % (s_tmp, s_half))
    a.i("s_add_u32 s%d, s%d, s%d" % (s_kvbase, s_kvbase, s_tmp))
    a.i("s_add_u32 s%d, s%d, 0x%x" % (s_kvbase, s_kvbase, 6144 * 256))
    a.i("s_lshl_b32 s%d, s%d, 10" % (s_off, s_b))
    a.i("s_lshl_b32 s%d, s%d, 8" % (s_wqoff, s_h))
    a.i("v_and_b32 v%d, 0x1c0, v0" % v_wq)
    a.i("v_add_u32 v%d, v%d, v%d" % (v_wq, v_wq, v_g))
    a.i("v_lshl_add_u32 v%d, v%d, 2, v%d" % (v_x, v_c, v_wq))
    a.i("v_lshlrev_b32 v%d, 1, v%d" % (v_x, v_x))
    a.i("v_lshlrev_b32 v%d, 13, v%d" % (v_wq, v_wq))
    a.i("v_lshl_add_u32 v%d, v%d, 4, v%d" % (v_wq, v_c, v_wq))
    a.i("v_lshlrev_b32 v%d, 15, v%d" % (v_kv, v_t0))
    a.i("v_lshl_add_u32 v%d, v%d, 4, v%d" % (v_kv, v_lane, v_kv))
    a.i("s_lshl_b32 s%d, s2, 3" % s_rot)
    a.i("s_add_u32 s%d, s%d, s%d" % (s_rot, s_rot, s_wave))
    a.i("s_add_u32 s%d, s%d, 1" % (s_rot, s_rot))
    a.i("s_mul_i32 s%d, s%d, 0x9e3779b1" % (s_rot, s_rot))
    a.i("s_lshr_b32 s%d, s%d, 15" % (s_tmp, s_rot))
    a.i("s_xor_b32 s%d, s%d, s%d" % (s_rot, s_rot, s_tmp))
    a.i("s_mul_i32 s%d, s%d, 0x85ebca6b" % (s_rot, s_rot))
    a.i("s_lshr_b32 s%d, s%d, 13" % (s_rot, s_rot))
    a.i("s_and_b32 s%d, s%d, 0x7000" % (s_kvo, s_rot))
    a.i("s_add_u32 s%d, s%d, s%d" % (s_kvo, s_kvo, s_kvbase))
    for (r, sz) in ((SX, 2048), (SWQ, 0x400000), (SK, 0x8000000), (SV, 0x8000000), (SWO, 0x400000), (SWS, 0x400000), (SOUT, 4096)):
        a.i("s_mov_b32 s%d, 0x%x" % (r + 2, sz))
        a.i("s_mov_b32 s%d, 0x20000" % (r + 3))
    a.i("s_lshl_b32 s%d, s%d, 1" % (s_grp, s_br))
    a.i("s_or_b32 s%d, s%d, s%d" % (s_grp, s_grp, s_b))
    a.i("s_lshl_b32 s%d, s%d, 8" % (s_epo, s_grp))
    a.i("s_add_u32 s%d, s%d, 0x%x" % (s_epo, s_epo, WS_EP))
    a.i("s_cmp_eq_u32 s%d, 0" % s_br)
    a.i("s_waitcnt lgkmcnt(0)")
    if ts: a.i("s_memrealtime s[100:101]")
    def sel(r, A, B):
        a.i("s_cselect_b32 s%d, s%d, s%d" % (r, A, B))
        a.i("s_cselect_b32 s%d, s%d, s%d" % (r + 1, A + 1, B + 1))
    sel(SX, 16, 26)
    sel(SWQ, 22, 32)
    sel(SK, 18, 28)
    a.i("buffer_load_ushort v%d, v%d, s[%d:%d], s%d offen" % (v_x, v_x, SX, SX + 3, s_off), tag="x")
    sel(SV, 20, 30)
    sel(SWO, 24, 34)
    def load(key):
        kind, i = key
        if kind == "ex":
            a.i("buffer_load_dwordx2 v[%d:%d], v%d, s[%d:%d], s%d offen sc1" % (v_e, v_e + 1, v_exa, SWS, SWS + 3, s_ex), tag=key)
            return
        k = S["free"].pop(0); S["where"][key] = k
        if kind == "wq":
            if i > 0: a.i("s_add_u32 s%d, s%d, 32768" % (s_wqoff, s_wqoff))
            a.i("buffer_load_dwordx4 %s, v%d, s[%d:%d], s%d offen%s" % (vr(slot(k)), v_wq, SWQ, SWQ + 3, s_wqoff, WNT), tag=key)
        elif kind == "wo" and nt:
            if i > 0: a.i("s_add_u32 s%d, s%d, 8192" % (s_wooff, s_wooff))
            a.i("buffer_load_dwordx4 %s, v%d, s[%d:%d], s%d offen%s" % (vr(slot(k)), v_wo, SWO, SWO + 3, s_wooff, WNT), tag=key)
        elif kind == "wo":
            if i > 0 and i % 4 == 0: a.i("s_add_u32 s%d, s%d, 4096" % (s_wooff, s_wooff))
            a.i("buffer_load_dwordx4 %s, v%d, s[%d:%d], s%d offen offset:%d%s" % (vr(slot(k)), v_wo, SWO, SWO + 3, s_wooff, (i % 4) * 256, WNT), tag=key)
        else:
            j = i // 4
            if j >= S["kvo"]:
                a.i("s_add_u32 s%d, s%d, 4096" % (s_rot, s_rot))
                a.i("s_and_b32 s%d, s%d, 0x7000" % (s_kvo + j, s_rot))
                a.i("s_add_u32 s%d, s%d, s%d" % (s_kvo + j, s_kvo + j, s_kvbase))
                S["kvo"] = j + 1
            r = SK if kind == "k" else SV
            a.i("buffer_load_dwordx4 %s, v%d, s[%d:%d], s%d offen offset:%d%s" % (vr(slot(k)), v_kv, r, r + 3, s_kvo + j, (i % 4) * 1024, KVNT), tag=key)
    KV = [("k", i) for i in range(32)] + [("v", i) for i in range(32)]
    before = {}
    for i in range(16):
        before.setdefault(q0 + i * qm // 10, []).append(("wq", i))
        before.setdefault(64 if i >= 16 - od else o0 + i * om // 10, []).append(("wo", i))
    before.setdefault(32 + exi, []).append(("ex", 0))
    assert max(before) <= 64
    L = []
    for n, k in enumerate(KV):
        L += before.get(n, []); L.append(k)
    L += before.get(64, [])
    idx = {k: n for n, k in enumerate(L)}
    def issue_upto(n):
        while S["issued"] <= min(n, len(L) - 1) and S["free"]:
            load(L[S["issued"]]); S["issued"] += 1
    S["pos"] = 0
    def adv():
        key = L[S["pos"]]
        assert S["pos"] < S["issued"], key
        a.wait_vm(key)
        S["pos"] += 1
    def refill():
        issue_upto(reach(S["pos"] - 1, win(S["pos"] - 1)))
    def need(key):
        while S["pos"] <= idx[key]:
            adv()
            if S["pos"] <= idx[key]: refill()
    cum = [0]
    for k in L: cum.append(cum[-1] + (ww if k[0] in ("wq", "wo") else 0 if k[0] == "ex" else 4))
    def reach(n, d):
        m = n
        while m + 1 < len(L) and cum[m + 2] - cum[n + 1] <= 4 * d: m += 1
        return m
    def win(n):
        if De and n >= len(L) - Xe: return De
        if S.get("fast") and f0 <= n < f1: return Df
        return S["D"]
    def done(key):
        S["free"].append(S["where"].pop(key))
        refill()
    issue_upto(1)
    a.i("s_load_dword s%d, s[40:41], s%d" % (s_ep, s_epo))
    for (r, A) in ((SWS, 40), (SOUT, 36)):
        a.i("s_mov_b32 s%d, s%d" % (r, A)); a.i("s_mov_b32 s%d, s%d" % (r + 1, A + 1))
    issue_upto(reach(-1, D0 or D))
    if fine: stamp()
    a.i("s_lshl_b32 s%d, s%d, 1" % (s_p, s_h))
    a.i("s_or_b32 s%d, s%d, s%d" % (s_p, s_p, s_half))
    a.i("s_lshl_b32 s%d, s%d, 6" % (s_id, s_grp))
    a.i("s_add_u32 s%d, s%d, s%d" % (s_id, s_id, s_p))
    a.i("s_lshl_b32 s%d, s%d, 17" % (s_ybase, s_grp))
    a.i("s_lshl_b32 s%d, s%d, 11" % (s_inbox, s_p))
    a.i("s_add_u32 s%d, s%d, s%d" % (s_inbox, s_inbox, s_ybase))
    a.i("s_lshl_b32 s%d, s%d, %d" % (s_tmp, s_p, lgCW + 2))
    a.i("s_add_u32 s%d, s%d, s%d" % (s_ybase, s_ybase, s_tmp))
    a.i("v_lshlrev_b32 v%d, 2, v0" % v_tid4)
    if nt:
        a.i("v_and_b32 v%d, 0x1c3, v0" % (v_t0 + 2))
        a.i("v_bfe_u32 v%d, v0, 2, 2" % (v_t0 + 1))
        a.i("v_lshl_add_u32 v%d, v%d, 4, v%d" % (v_t0 + 2, v_t0 + 1, v_t0 + 2))
        a.i("v_bfe_u32 v%d, v0, 5, 1" % (v_t0 + 1))
        a.i("v_lshl_add_u32 v%d, v%d, 2, v%d" % (v_t0 + 2, v_t0 + 1, v_t0 + 2))
        a.i("v_bfe_u32 v%d, v0, 4, 1" % (v_t0 + 1))
        a.i("v_lshl_add_u32 v%d, v%d, 3, v%d" % (v_t0 + 2, v_t0 + 1, v_t0 + 2))
        a.i("v_lshrrev_b32 v%d, %d, v%d" % (v_y, lgCW, v_t0 + 2))
        a.i("v_lshlrev_b32 v%d, %d, v%d" % (v_y, lgCW + 8, v_y))
        a.i("v_and_b32 v%d, %d, v%d" % (v_t0 + 1, CW - 1, v_t0 + 2))
        a.i("v_lshl_add_u32 v%d, v%d, 2, v%d" % (v_y, v_t0 + 1, v_y))
    else:
        a.i("v_lshrrev_b32 v%d, %d, v0" % (v_y, lgCW))
        a.i("v_lshlrev_b32 v%d, %d, v%d" % (v_y, lgCW + 8, v_y))
        a.i("v_and_b32 v%d, %d, v%d" % (v_t0 + 1, CW * 4 - 1, v_tid4))
        a.i("v_add_u32 v%d, v%d, v%d" % (v_y, v_y, v_t0 + 1))
    a.i("s_lshr_b32 s%d, s%d, 1" % (s_ex, s_id))
    a.i("s_lshl_b32 s%d, s%d, 10" % (s_ex, s_ex))
    a.i("s_add_u32 s%d, s%d, 0x%x" % (s_ex, s_ex, WS_EX + exo))
    a.i("v_lshlrev_b32 v%d, 6, v%d" % (v_exa, v_c))
    a.i("s_lshl_b32 s%d, s%d, 3" % (s_tmp, s_half))
    a.i("s_add_u32 s%d, s%d, s%d" % (s_tmp, s_tmp, s_wave))
    a.i("s_lshl_b32 s%d, s%d, 6" % (s_tmp, s_tmp))
    a.i("v_mov_b32 v%d, s%d" % (v_f, s_tmp))
    if exm == 1:
        a.i("v_and_b32 v%d, 3, v0" % (v_t0 + 1))
        a.i("v_lshl_add_u32 v%d, v%d, 4, v%d" % (v_f, v_t0 + 1, v_f))
    a.i("v_mov_b32 v%d, 0" % v_zero)
    a.i("v_mov_b32 v%d, 0xffffff00" % v_ff)
    a.i("s_lshl_b32 s%d, s%d, 17" % (s_wooff, s_h))
    if nt:
        a.i("v_lshrrev_b32 v%d, 3, v%d" % (v_wo, v_lane))
        a.i("v_lshlrev_b32 v%d, 10, v%d" % (v_wo, v_wo))
        a.i("v_lshl_add_u32 v%d, v%d, 7, v%d" % (v_wo, v_t0, v_wo))
        a.i("v_and_b32 v%d, 7, v0" % (v_t0 + 1))
        a.i("v_lshl_add_u32 v%d, v%d, 4, v%d" % (v_wo, v_t0 + 1, v_wo))
        a.i("v_lshlrev_b32 v%d, 12, v%d" % (v_stw, v_t0))
        a.i("v_lshl_add_u32 v%d, v%d, 10, v%d" % (v_str, v_g, v_stw))
        a.i("v_lshl_add_u32 v%d, v%d, 5, v%d" % (v_str, v_c, v_str))
        a.i("v_lshl_add_u32 v%d, v%d, 4, v%d" % (v_stw, v_lane, v_stw))
        a.i("v_mul_u32_u24 v%d, 288, v%d" % (v_ldsY, v_t0))
        a.i("v_lshl_add_u32 v%d, v%d, 4, v%d" % (v_ldsY, v_c, v_ldsY))
        a.i("v_and_b32 v%d, 1, v%d" % (v_t0 + 1, v_g))
        a.i("v_lshl_add_u32 v%d, v%d, 3, v%d" % (v_ldsY, v_t0 + 1, v_ldsY))
        a.i("v_lshrrev_b32 v%d, 2, v%d" % (v_t0 + 1, v_c))
        a.i("v_and_b32 v%d, 1, v0" % v_ord)
        a.i("v_lshl_add_u32 v%d, v%d, 1, v%d" % (v_ord, v_t0 + 1, v_ord))
        a.i("v_mul_u32_u24 v%d, 288, v%d" % (v_ord, v_ord))
        a.i("v_lshl_add_u32 v%d, v%d, 4, v%d" % (v_ord, v_g, v_ord))
    else:
        a.i("v_lshl_add_u32 v%d, v%d, 4, v%d" % (v_ord, v_t0, v_g))
        a.i("v_lshlrev_b32 v%d, 10, v%d" % (v_wo, v_ord))
        a.i("v_lshl_add_u32 v%d, v%d, 4, v%d" % (v_wo, v_c, v_wo))
        a.i("v_and_b32 v%d, 3, v%d" % (v_t0 + 1, v_c))
        a.i("v_lshl_add_u32 v%d, v%d, 2, v%d" % (v_ord, v_t0 + 1, v_ord))
        a.i("v_lshlrev_b32 v%d, 2, v%d" % (v_ord, v_ord))
        a.i("v_add_u32 v%d, 0x2000, v%d" % (v_ord, v_ord))
    for (r, val) in ((s_m1, 0xcccccccc), (s_m0, 0xaaaaaaaa)):
        a.i("s_mov_b32 s%d, 0x%x" % (r, val)); a.i("s_mov_b32 s%d, 0x%x" % (r + 1, val))
    a.i("s_mov_b32 s%d, 0x%x" % (s_log2e, LOG2E))
    a.i("s_mov_b32 s%d, 0x%x" % (s_scale, SCALE))
    a.i("v_mov_b32 v%d, 0xffff" % (v_t0 + 2))
    a.i("v_mov_b32 v%d, 0xffff0000" % (v_t0 + 3))
    a.i("v_cndmask_b32 v%d, v%d, v%d, s[%d:%d]" % (v_t0 + 2, v_t0 + 2, v_t0 + 3, s_m0, s_m0 + 1))
    a.i("v_bfe_u32 v%d, v0, 1, 2" % (v_t0 + 3))
    for t in range(4):
        a.i("v_cmp_eq_u32 vcc, %d, v%d" % (t, v_t0 + 3))
        a.i("v_cndmask_b32 v%d, 0, v%d, vcc" % (v_mask + t, v_t0 + 2))
    a.i("v_and_b32 v%d, 1, v%d" % (v_t0 + 3, v_g))
    a.i("v_lshlrev_b32 v%d, 4, v%d" % (v_t0 + 3, v_t0 + 3))
    a.i("v_lshl_add_u32 v%d, v%d, 5, v%d" % (v_t0 + 3, v_c, v_t0 + 3))
    a.i("v_lshl_add_u32 v%d, v%d, 9, v%d" % (v_ldsD, v_t0, v_t0 + 3))
    if not nt: a.i("v_lshl_add_u32 v%d, v%d, 11, v%d" % (v_ldsY, v_t0, v_t0 + 3))
    a.i("s_lshl_b32 s%d, s%d, 11" % (s_outoff, s_b))
    a.i("s_lshl_b32 s%d, s%d, 10" % (s_tmp, s_br))
    a.i("s_add_u32 s%d, s%d, s%d" % (s_outoff, s_outoff, s_tmp))
    a.i("s_lshl_b32 s%d, s%d, 4" % (s_tmp, s_p))
    a.i("s_add_u32 s%d, s%d, s%d" % (s_outoff, s_outoff, s_tmp))
    if prio:
        a.i("s_cmp_lt_u32 s%d, 4" % s_wave)
        a.i("s_cbranch_scc1 L_noprio")
        a.i("s_setprio 1")
        a.label("L_noprio")
    def buildA(vec, i, A):
        for t in range(4):
            a.i("v_and_b32_dpp v%d, v%d, v%d row_newbcast:%d row_mask:0xf bank_mask:0xf" % (A + t, vec, v_mask + t, i))
    def gemv_block(vec, keys, first, hook=None):
        buildA(vec, 0, v_A[0])
        for i, key in enumerate(keys):
            if i + 1 < len(keys): buildA(vec, i + 1, v_A[(i + 1) % 2])
            need(key)
            c = "0" if (first and i == 0) else vr(v_D)
            a.i("v_mfma_f32_16x16x32_bf16 %s, %s, %s, %s" % (vr(v_D), vr(v_A[i % 2]), vr(slot(S["where"][key])), c))
            done(key)
            if hook: hook(key)
            if fine and key in (("wq", 0), ("wq", 7), ("v", 0), ("v", 15)): stamp()
    a.wait_vm("x")
    if fine: stamp()
    a.i("v_lshl_or_b32 v%d, v%d, 16, v%d" % (v_x, v_x, v_x))
    gemv_block(v_x, [("wq", i) for i in range(16)], True)
    stamp()
    issue_upto(reach(S["pos"] - 1, D + bq))
    a.i("ds_write_b128 v%d, %s" % (v_ldsD, vr(v_D)))
    a.i("v_lshlrev_b32 v%d, 3, v%d" % (v_t0, v_lane))
    a.i("v_and_b32 v%d, 0x700, v%d" % (v_t0 + 3, v_tid4))
    a.i("v_lshl_add_u32 v%d, v%d, 4, v%d" % (v_t0 + 3, v_c, v_t0 + 3))
    a.i("s_waitcnt lgkmcnt(0)")
    a.i("s_barrier")
    for w in range(8):
        a.i("ds_read_b64 v[%d:%d], v%d offset:%d" % (v_T + 2 * w, v_T + 2 * w + 1, v_t0, w * 512))
    a.i("s_add_u32 s%d, s%d, 1" % (s_tag, s_ep))
    a.i("s_and_b32 s%d, s%d, 0xff" % (s_tagb, s_tag))
    if t16: a.i("s_and_b32 s%d, s%d, 0xffff" % (s_t16, s_tag))
    a.i("s_waitcnt lgkmcnt(0)")
    for step in (1, 2, 4):
        for w in range(0, 8, 2 * step):
            a.i("v_add_f32 v%d, v%d, v%d" % (v_T + 2 * w, v_T + 2 * w, v_T + 2 * (w + step)))
            a.i("v_add_f32 v%d, v%d, v%d" % (v_T + 2 * w + 1, v_T + 2 * w + 1, v_T + 2 * (w + step) + 1))
    a.i("v_cvt_pk_bf16_f32 v%d, v%d, v%d" % (v_T, v_T, v_T + 1))
    a.i("ds_write_b32 v%d, v%d offset:4096" % (v_tid4, v_T))
    a.i("s_waitcnt lgkmcnt(0)")
    a.i("ds_read_b128 %s, v%d offset:4096" % (vr(v_q), v_t0 + 3))
    a.i("s_waitcnt lgkmcnt(0)")
    stamp()

    def stream_part(sfx):
        for blk in range(2):
            for i in range(16):
                a.i("v_mov_b32 v%d, 0" % (v_T + i))
            for i in range(16):
                key = ("k", blk * 16 + i)
                need(key)
                for t in range(4):
                    a.i("v_dot2c_f32_bf16 v%d, v%d, v%d" % (v_T + i, slot(S["where"][key]) + t, v_q + t))
                done(key)
                if idx[key] < S["pos"] - 1:
                    S["bk"] = S.get("bk", 0) + 1
                    if S["bk"] % bk == 0 and S["pos"] < S["issued"]:
                        adv(); refill()
            T = v_T
            for k in range(8):
                a.i("v_add_f32_dpp v%d, v%d, v%d row_ror:8 row_mask:0xf bank_mask:0x3" % (T + k, T + k, T + k))
            for k in range(8):
                a.i("v_add_f32_dpp v%d, v%d, v%d row_ror:8 row_mask:0xf bank_mask:0xc" % (T + k, T + k + 8, T + k + 8))
            for k in range(4):
                a.i("v_add_f32_dpp v%d, v%d, v%d row_half_mirror row_mask:0xf bank_mask:0x5" % (T + k, T + k, T + k))
            for k in range(4):
                a.i("v_add_f32_dpp v%d, v%d, v%d row_half_mirror row_mask:0xf bank_mask:0xa" % (T + k, T + k + 4, T + k + 4))
            for k in range(4):
                a.i("v_add_f32_dpp v%d, v%d, v%d quad_perm:[2,3,0,1] row_mask:0xf bank_mask:0xf" % (T + k, T + k, T + k))
            for k in range(2):
                a.i("v_cndmask_b32 v%d, v%d, v%d, s[%d:%d]" % (T + k, T + k, T + k + 2, s_m1, s_m1 + 1))
            for k in range(2):
                a.i("v_add_f32_dpp v%d, v%d, v%d quad_perm:[1,0,3,2] row_mask:0xf bank_mask:0xf" % (T + k, T + k, T + k))
            s = v_s[blk]
            a.i("v_cndmask_b32 v%d, v%d, v%d, s[%d:%d]" % (s, T, T + 1, s_m0, s_m0 + 1))
            a.i("v_cvt_pk_bf16_f32 v%d, v%d, v%d" % (s, s, s))
            a.i("v_and_b32 v%d, 0xffff0000, v%d" % (s, s))
            a.i("v_mul_f32 v%d, s%d, v%d" % (s, s_scale, s))
            a.i("v_cvt_pk_bf16_f32 v%d, v%d, v%d" % (s, s, s))
            a.i("v_and_b32 v%d, 0xffff0000, v%d" % (s, s))
        stamp()
        issue_upto(reach(S["pos"] - 1, S["D"] + bs))
        def wave_red(op, r):
            out = []
            for rot in (8, 4, 2, 1):
                out.append("%s_dpp v%d, v%d, v%d row_ror:%d row_mask:0xf bank_mask:0xf" % (op, r, r, r, rot))
            out.append("%s_dpp v%d, v%d, v%d row_bcast:15 row_mask:0xa bank_mask:0xf" % (op, r, r, r))
            out.append("%s_dpp v%d, v%d, v%d row_bcast:31 row_mask:0xc bank_mask:0xf" % (op, r, r, r))
            return out
        m, l = v_t0, v_t0 + 1
        a.i("v_max_f32 v%d, v%d, v%d" % (m, v_s[0], v_s[1]))
        for x in wave_red("v_max_f32", m): a.i(x)
        a.i("v_readlane_b32 s%d, v%d, 63" % (s_mx, m))
        for s in v_s: a.i("v_subrev_f32 v%d, s%d, v%d" % (s, s_mx, s))
        for s in v_s: a.i("v_mul_f32 v%d, s%d, v%d" % (s, s_log2e, s))
        for s in v_s: a.i("v_exp_f32 v%d, v%d" % (s, s))
        a.i("v_add_f32 v%d, v%d, v%d" % (l, v_s[0], v_s[1]))
        for s in v_s: a.i("v_cvt_pk_bf16_f32 v%d, v%d, v%d" % (s, s, s))
        stamp()
        fill = wave_red("v_add_f32", l)
        fill.append("v_or_b32 v%d, s%d, v%d" % (m, s_t16, m))
        fill.append("v_and_or_b32 v%d, v%d, v%d, s%d" % (l, l, v_ff, s_tagb))
        e0, e1, t1, t2 = v_e, v_e + 1, v_t0 + 2, v_t0 + 3
        S["won"] = 0
        def wo_tr():
            while nt and S["won"] < 16 and idx[("wo", S["won"])] < S["pos"]:
                n = S["won"]; S["won"] += 1
                a.i("ds_write_b128 v%d, %s offset:%d" % (v_stw, vr(slot(S["where"][("wo", n)])), 16384 + (n % 4) * 1024))
                if n % 4 == 3:
                    for nb in range(4):
                        r = slot(S["where"][("wo", n - 3 + nb)])
                        for hf in range(2):
                            a.i("ds_read_b64_tr_b16 v[%d:%d], v%d offset:%d" % (r + 2 * hf, r + 2 * hf + 1, v_str, 16384 + hf * 512 + nb * 8))
        def hook(key):
            wo_tr()
            if fill:
                a.i(fill.pop(0))
                if not fill:
                    a.i("s_mov_b32 exec_lo, 0")
                    if exm == 0:
                        a.i("s_mov_b32 exec_hi, 0x80000000")
                        a.i("buffer_store_dwordx2 v[%d:%d], v%d, s[%d:%d], s%d offen sc1" % (m, l, v_f, SWS, SWS + 3, s_ex), tag="exst")
                    elif exm == 1:
                        a.i("s_mov_b32 exec_hi, 0xf0000000")
                        a.i("buffer_store_dwordx4 v[%d:%d], v%d, s[%d:%d], s%d offen sc1" % (m, m + 3, v_f, SWS, SWS + 3, s_ex), tag="exst")
                    a.i("s_mov_b64 exec, -1")
            if key == ("v", exu):
                assert ("ex", 0) not in a.vm and idx[("ex", 0)] < S["issued"]
                a.i("s_mov_b32 s%d, %d" % (s_spin, NSPIN if exm < 2 else 0))
                a.label("L_ex" + sfx)
                if t16:
                    a.i("v_bitop3_b32 v%d, v%d, s%d, v%d bitop3:0x14" % (t1, e1, s_t16, v_ff))
                    a.i("v_bitop3_b32 v%d, v%d, s%d, v%d bitop3:0xf6" % (t1, t1, s_t16, e0))
                    a.i("v_and_b32 v%d, 0xffff, v%d" % (t1, t1))
                else:
                    a.i("v_xor_b32 v%d, s%d, v%d" % (t1, s_tagb, e0))
                    a.i("v_bitop3_b32 v%d, v%d, s%d, v%d bitop3:0xf6" % (t1, t1, s_tagb, e1))
                    a.i("v_and_b32 v%d, 0xff, v%d" % (t1, t1))
                a.i("v_cmp_ne_u32 vcc, 0, v%d" % t1)
                a.i("s_cbranch_vccz L_ex_ok" + sfx)
                a.i("s_sub_u32 s%d, s%d, 1" % (s_spin, s_spin))
                a.i("s_cbranch_scc1 L_ex_ok" + sfx)
                a.i("s_sleep 4")
                a.i("buffer_load_dwordx2 v[%d:%d], v%d, s[%d:%d], s%d offen sc1" % (v_e, v_e + 1, v_exa, SWS, SWS + 3, s_ex))
                a.vm.pop()
                a.i("s_waitcnt vmcnt(0)")
                a.i("s_branch L_ex" + sfx)
                a.label("L_ex_ok" + sfx)
                a.i("v_and_b32 v%d, 0xffff0000, v%d" % (e0, e0))
                a.i("v_max_f32_dpp v%d, v%d, v%d row_ror:8 row_mask:0xf bank_mask:0xf" % (t1, e0, e0))
                for rot in (4, 2, 1):
                    a.i("v_max_f32_dpp v%d, v%d, v%d row_ror:%d row_mask:0xf bank_mask:0xf" % (t1, t1, t1, rot))
                a.i("v_sub_f32 v%d, v%d, v%d" % (e0, e0, t1))
                a.i("v_sub_f32 v%d, s%d, v%d" % (t2, s_mx, t1))
                a.i("v_mul_f32 v%d, s%d, v%d" % (e0, s_log2e, e0))
                a.i("v_mul_f32 v%d, s%d, v%d" % (t2, s_log2e, t2))
                a.i("v_exp_f32 v%d, v%d" % (e0, e0))
                a.i("v_exp_f32 v%d, v%d" % (t2, t2))
                a.i("v_mul_f32 v%d, v%d, v%d" % (e0, e0, e1))
                for rot in (8, 4, 2, 1):
                    a.i("v_add_f32_dpp v%d, v%d, v%d row_ror:%d row_mask:0xf bank_mask:0xf" % (e0, e0, e0, rot))
                a.i("v_rcp_f32 v%d, v%d" % (e0, e0))
                a.i("v_mul_f32 v%d, v%d, v%d" % (v_f, t2, e0))
        gemv_block(v_s[0], [("v", i) for i in range(16)], True, hook)
        assert not fill
        gemv_block(v_s[1], [("v", i) for i in range(16, 32)], False, hook)
        stamp()
        issue_upto(len(L) - 1)
        if nt:
            assert S["won"] == 16
            for t in range(4): a.i("v_mul_f32 v%d, v%d, v%d" % (v_D + t, v_f, v_D + t))
            for e in range(2): a.i("v_cvt_pk_bf16_f32 v%d, v%d, v%d" % (v_D + e, v_D + 2 * e, v_D + 2 * e + 1))
            a.i("ds_write_b64 v%d, v[%d:%d] offset:8192" % (v_ldsY, v_D, v_D + 1))
            a.i("s_waitcnt lgkmcnt(0)")
            a.i("s_barrier")
            for kb in range(4): a.i("ds_read_b128 %s, v%d offset:%d" % (vr(v_T + 4 * kb), v_ord, 8192 + 64 * kb))
            if tf: stamp()
            for kb in range(4):
                a.i("s_waitcnt lgkmcnt(%d)" % (0 if tf else 3 - kb))
                if tf and kb == 0: stamp()
                for nb in range(4):
                    acc = 12 + 4 * nb
                    a.i("v_mfma_f32_16x16x32_bf16 %s, %s, %s, %s" % (vr(acc), vr(v_T + 4 * kb), vr(slot(S["where"][("wo", 4 * kb + nb)])), "0" if kb == 0 else vr(acc)))
            if tf: stamp()
        else:
            for t in range(4): a.i("v_mul_f32 v%d, v%d, v%d" % (v_D + t, v_f, v_D + t))
            a.i("ds_write_b128 v%d, %s offset:8192" % (v_ldsD, vr(v_D)))
            a.i("s_waitcnt lgkmcnt(0)")
            a.i("s_barrier")
            for w in range(0, 8, 2):
                a.i("ds_read2st64_b32 v[%d:%d], v%d offset0:%d offset1:%d" % (v_T + w, v_T + w + 1, v_ord, 2 * w, 2 * w + 2))
            a.i("s_waitcnt lgkmcnt(0)")
            for step in (1, 2, 4):
                for w in range(0, 8, 2 * step):
                    a.i("v_add_f32 v%d, v%d, v%d" % (v_T + w, v_T + w, v_T + w + step))
            v_o = v_s[0]
            a.i("v_cvt_pk_bf16_f32 v%d, v%d, v%d" % (v_o, v_T, v_T))
            buildA(v_o, 0, v_A[0])
            for ip in range(4):
                for cb in range(4):
                    c = "0" if ip == 0 else vr(v_T + 4 * cb)
                    need(("wo", 4 * ip + cb))
                    a.i("v_mfma_f32_16x16x32_bf16 %s, %s, %s, %s" % (vr(v_T + 4 * cb), vr(v_A[ip % 2]), vr(slot(S["where"][("wo", 4 * ip + cb)])), c))
                    if cb == 0 and ip < 3: buildA(v_o, ip + 1, v_A[(ip + 1) % 2])
            a.i("s_mov_b32 exec_hi, 0")
            for cb in range(4):
                a.i("ds_write_b128 v%d, %s offset:%d" % (v_ldsY, vr(v_T + 4 * cb), 16384 + cb * 512))
            a.i("s_mov_b32 exec_hi, -1")
            a.i("s_waitcnt lgkmcnt(0)")
            a.i("s_barrier")
    if smode:
        if smode & 1:
            a.i("s_lshr_b32 s%d, s%d, 8" % (s_tmp, SWQ))
            a.i("s_add_u32 s%d, s%d, s%d" % (s_tmp, s_tmp, s_h))
            a.i("s_and_b32 s%d, s%d, 3" % (s_tmp, s_tmp))
            a.i("s_cmp_eq_u32 s%d, 1" % s_tmp)
            a.i("s_cbranch_scc1 L_slow")
        if smode & 2:
            a.i("s_cmp_ge_u32 s%d, 4" % s_wave)
            a.i("s_cbranch_scc1 L_slow")
        S0 = copy.deepcopy(S); vm0 = list(a.vm); n0 = nst[0]
        S["fast"] = 1
        stream_part("_a")
        a.i("s_branch L_join")
        a.label("L_slow")
        a.i("s_nop 7")
        S.clear(); S.update(S0); a.vm = vm0; nst[0] = n0
        S["D"] = Ds or D
        stream_part("_b")
        a.label("L_join")
    else:
        stream_part("_a")
    if nt:
        for nb in range(4): a.i("v_add_f32 v%d, v%d, v%d" % (12 + 4 * nb, 12 + 4 * nb, 13 + 4 * nb))
        a.i("v_permlane32_swap_b32 v12, v16")
        a.i("v_permlane32_swap_b32 v20, v24")
        a.i("v_add_f32 v12, v12, v16")
        a.i("v_add_f32 v20, v20, v24")
        a.i("v_permlane16_swap_b32 v12, v20")
        a.i("v_add_f32 v12, v12, v20")
        a.i("v_and_or_b32 v12, v12, v%d, s%d" % (v_ff, s_tagb))
        a.i("buffer_store_dword v12, v%d, s[%d:%d], s%d offen sc1" % (v_y, SWS, SWS + 3, s_ybase), tag="y")
    else:
        for w in range(0, 8, 2):
            a.i("ds_read2st64_b32 v[%d:%d], v%d offset0:%d offset1:%d" % (v_T + w, v_T + w + 1, v_tid4, 64 + 8 * w, 64 + 8 * w + 8))
        a.i("s_waitcnt lgkmcnt(0)")
        for step in (1, 2, 4):
            for w in range(0, 8, 2 * step):
                a.i("v_add_f32 v%d, v%d, v%d" % (v_T + w, v_T + w, v_T + w + step))
        a.i("v_and_or_b32 v%d, v%d, v%d, s%d" % (v_T, v_T, v_ff, s_tagb))
        a.i("buffer_store_dword v%d, v%d, s[%d:%d], s%d offen sc1" % (v_T, v_y, SWS, SWS + 3, s_ybase), tag="y")
    stamp()
    END = "L_ts" if ts else "L_end1"
    if exp:
        a.i("s_waitcnt vmcnt(0)")
        a.i("s_branch L_ts")
    if NC < 64:
        a.i("s_and_b32 s%d, s%d, %d" % (s_tmp, s_p, 64 // NC - 1))
        a.i("s_cbranch_scc1 %s" % END)
    if pbar: a.i("s_barrier")
    a.i("s_cmp_lg_u32 s%d, 0" % s_wave)
    a.i("s_cbranch_scc1 %s" % END)
    a.vm = []
    NL = CW // 4
    vy, vt = 64, 128
    Q = CW // 4
    a.i("v_lshlrev_b32 v%d, 4, v%d" % (vt, v_lane))
    a.i("v_add_u32 v%d, 0x1000, v%d" % (vt + 1, vt))
    a.i("s_mov_b32 s%d, %d" % (s_spin, NSPIN))
    a.i("v_bfe_u32 v%d, v%d, 4, 1" % (vt + 2, v_lane))
    a.i("v_bfe_u32 v%d, v%d, 5, 1" % (vt + 3, v_lane))
    a.i("v_lshl_add_u32 v%d, v%d, 1, v%d" % (vt + 2, vt + 2, vt + 3))
    a.i("v_and_b32 v%d, %d, v%d" % (vt + 3, Q - 1, v_lane))
    a.i("v_lshl_add_u32 v%d, v%d, 2, v%d" % (vt + 2, vt + 3, vt + 2))
    a.i("v_lshlrev_b32 v%d, 1, v%d" % (vt + 2, vt + 2))
    if outw:
        a.i("buffer_load_ushort v%d, v%d, s[%d:%d], s%d offen" % (vt + 5, vt + 2, SOUT, SOUT + 3, s_outoff))
        a.vm = []
    if pm:
        s_mk = 44
        s_u = 60
        def ld(k):
            a.i("buffer_load_dwordx4 %s, v%d, s[%d:%d], s%d offen offset:%d sc1" % (vr(vy + 4 * k), vt + (k >> 2), SWS, SWS + 3, s_inbox, (k & 3) * 1024))
            a.vm = []
        for k in range(NL): ld(k)
        a.label("L_slowp")
        a.i("s_waitcnt vmcnt(0)")
        a.label("L_chk")
        ck = vt + 8
        for t in range(4):
            for k in range(NL):
                if t == 0: a.i("v_xor_b32 v%d, s%d, v%d" % (ck + k, s_tagb, vy + 4 * k))
                else: a.i("v_bitop3_b32 v%d, v%d, s%d, v%d bitop3:0xf6" % (ck + k, ck + k, s_tagb, vy + 4 * k + t))
        for k in range(NL): a.i("v_and_b32 v%d, 0xff, v%d" % (ck + k, ck + k))
        for k in range(NL): a.i("v_cmp_ne_u32 s[%d:%d], 0, v%d" % (s_mk + 2 * k, s_mk + 2 * k + 1, ck + k))
        a.i("s_or_b64 s[%d:%d], s[%d:%d], s[%d:%d]" % (s_u, s_u + 1, s_mk, s_mk + 1, s_mk + 2, s_mk + 3))
        for k in range(2, NL): a.i("s_or_b64 s[%d:%d], s[%d:%d], s[%d:%d]" % (s_u, s_u + 1, s_u, s_u + 1, s_mk + 2 * k, s_mk + 2 * k + 1))
        a.i("s_cbranch_scc0 L_poll_ok")
        for k in range(NL):
            a.i("s_mov_b64 exec, s[%d:%d]" % (s_mk + 2 * k, s_mk + 2 * k + 1))
            ld(k)
        a.i("s_mov_b64 exec, -1")
        a.i("s_sub_u32 s%d, s%d, 1" % (s_spin, s_spin))
        a.i("s_cbranch_scc1 L_poll_ok")
        a.i("s_bcnt1_i32_b64 s%d, s[%d:%d]" % (s_tmp, s_u, s_u + 1))
        a.i("s_waitcnt vmcnt(%d)" % (NL * pcap))
        a.i("s_cmp_le_u32 s%d, %d" % (s_tmp, pth))
        a.i("s_cbranch_scc1 L_chk")
        if psl: a.i("s_sleep %d" % psl)
        a.i("s_branch L_slowp")
    else:
        a.label("L_poll")
        for k in range(NL):
            a.i("buffer_load_dwordx4 %s, v%d, s[%d:%d], s%d offen offset:%d sc1" % (vr(vy + 4 * k), vt + (k >> 2), SWS, SWS + 3, s_inbox, (k & 3) * 1024), tag=("y", k))
        chk = vt + 4
        for k in range(NL):
            a.wait_vm(("y", k))
            for t in range(4):
                if k == 0 and t == 0: a.i("v_xor_b32 v%d, s%d, v%d" % (chk, s_tagb, vy))
                else: a.i("v_bitop3_b32 v%d, v%d, s%d, v%d bitop3:0xf6" % (chk, chk, s_tagb, vy + 4 * k + t))
            if k > 0:
                for t in range(4):
                    a.i("v_add_f32 v%d, v%d, v%d" % (vy + t, vy + t, vy + 4 * k + t))
        a.i("v_and_b32 v%d, 0xff, v%d" % (chk, chk))
        a.i("v_cmp_ne_u32 vcc, 0, v%d" % chk)
        a.i("s_cbranch_vccz L_poll_ok")
        a.i("s_sub_u32 s%d, s%d, 1" % (s_spin, s_spin))
        a.i("s_cbranch_scc1 L_poll_ok")
        if sleep: a.i("s_sleep %d" % sleep)
        a.i("s_branch L_poll")
    a.label("L_poll_ok")
    if tf: stamp()
    vacc = vy
    if pm:
        vacc = vt + 16
        for k in range(0, NL, 2):
            for t in range(4): a.i("v_add_f32 v%d, v%d, v%d" % (vacc + 2 * k + t, vy + 4 * k + t, vy + 4 * k + 4 + t))
        st_ = 2
        while st_ < NL:
            for k in range(0, NL, 2 * st_):
                for t in range(4): a.i("v_add_f32 v%d, v%d, v%d" % (vacc + 2 * k + t, vacc + 2 * k + t, vacc + 2 * (k + st_) + t))
            st_ *= 2
    a.i("v_permlane32_swap_b32 v%d, v%d" % (vacc, vacc + 1))
    a.i("v_permlane32_swap_b32 v%d, v%d" % (vacc + 2, vacc + 3))
    a.i("v_add_f32 v%d, v%d, v%d" % (vacc, vacc, vacc + 1))
    a.i("v_add_f32 v%d, v%d, v%d" % (vacc + 2, vacc + 2, vacc + 3))
    a.i("v_permlane16_swap_b32 v%d, v%d" % (vacc, vacc + 2))
    a.i("v_add_f32 v%d, v%d, v%d" % (vacc, vacc, vacc + 2))
    if Q <= 2: a.i("v_add_f32_dpp v%d, v%d, v%d quad_perm:[2,3,0,1] row_mask:0xf bank_mask:0xf" % (vacc, vacc, vacc))
    if Q <= 4: a.i("v_add_f32_dpp v%d, v%d, v%d row_ror:4 row_mask:0xf bank_mask:0xf" % (vacc, vacc, vacc))
    a.i("v_add_f32_dpp v%d, v%d, v%d row_ror:8 row_mask:0xf bank_mask:0xf" % (vacc, vacc, vacc))
    a.i("v_cvt_pk_bf16_f32 v%d, v%d, v%d" % (vacc, vacc, vacc))
    em = ((1 << Q) - 1) * 0x00010001
    a.i("s_mov_b32 exec_lo, 0x%08x" % em)
    a.i("s_mov_b32 exec_hi, 0x%08x" % em)
    a.i("buffer_store_short v%d, v%d, s[%d:%d], s%d offen%s" % (vacc, vt + 2, SOUT, SOUT + 3, s_outoff, ("", " sc1", " sc0 sc1", " nt")[osc]))
    a.i("s_cmp_lg_u32 s%d, 0" % s_p)
    a.i("s_cbranch_scc1 L_noep")
    a.i("s_mov_b64 exec, 1")
    a.i("v_mov_b32 v%d, s%d" % (vt + 4, s_tag))
    a.i("buffer_store_dword v%d, v%d, s[%d:%d], s%d offen%s" % (vt + 4, v_zero, SWS, SWS + 3, s_epo, ("", " sc1", " sc0 sc1", " nt")[osc]))
    a.label("L_noep")
    if pad:
        a.i("s_add_u32 s98, s98, %d" % pad)
        a.label("L_pad")
        a.i("s_memrealtime s[100:101]")
        a.i("s_waitcnt lgkmcnt(0)")
        a.i("s_sub_u32 s100, s100, s98")
        a.i("s_cmp_lt_i32 s100, 0")
        a.i("s_cbranch_scc1 L_pad")
    if ts:
        a.label("L_ts")
        a.i("s_nop 7")
        stamp()
        a.i("s_waitcnt lgkmcnt(0)")
        a.i("s_mov_b64 exec, 1")
        a.i("s_lshl_b32 s%d, s2, 3" % s_off)
        a.i("s_add_u32 s%d, s%d, s%d" % (s_off, s_off, s_wave))
        a.i("s_lshl_b32 s%d, s%d, 6" % (s_off, s_off))
        a.i("s_add_u32 s%d, s%d, 0x%x" % (s_off, s_off, WS_TS))
        a.i("v_mov_b32 v%d, s98" % (v_T))
        a.i("v_mov_b32 v%d, s100" % (v_T + 1))
        assert nst[0] <= 13
        print("stamps:", nst[0] + 2)
        for k in range(nst[0]):
            a.i("v_mov_b32 v%d, s%d" % (v_T + 2 + k, s_ts + 2 * k))
        a.i("s_getreg_b32 s%d, hwreg(HW_REG_XCC_ID)" % s_tmp)
        a.i("s_lshl_b32 s%d, s%d, 16" % (s_tmp, s_tmp))
        a.i("s_add_u32 s%d, s%d, s%d" % (s_tmp, s_tmp, s_id))
        a.i("v_mov_b32 v%d, s%d" % (v_T + 15, s_tmp))
        for k in range(4):
            a.i("buffer_store_dwordx4 %s, v%d, s[%d:%d], s%d offen offset:%d" % (vr(v_T + 4 * k), v_zero, SWS, SWS + 3, s_off, 16 * k))
    a.label("L_end1")
    a.i("s_endpgm")
    k1 = a.text() + kd(kname, 256, 102)
    head = HDR + "; @launch grid=(256,1,1) block=(512,1,1) lds=%d\n" % (49152 if nt else 32768)
    head += '.amdgcn_target "amdgcn-amd-amdhsa--gfx950"\n.text\n'
    return head + k1

if __name__ == "__main__":
    out = sys.argv[1]
    kw = {}
    for arg in sys.argv[2:]:
        k, v = arg.split("=")
        kw[k] = int(v, 0)
    open(out, "w").write(gen(**kw))
```

```python
import sys, copy
from asmlib import Asm
from gen1 import NAME, HDR, vr, kd, LOG2E, SCALE

WS_TS = 2 << 20
WS_EX = 1 << 19
WS_EP = (1 << 19) + (1 << 17)

def gen(D=6, ts=0, mapn=1, sleep=2, NSPIN=20000, pad=0, kvnt=1, wnt=1, D0=0, bq=0, bs=0,
        De=0, Xe=0, fine=0, ww=4, kfirst=0, CW=16, exp=0, exi=22, exu=29, prio=0, Ds=0, outw=1, pbar=1, qm=10, q0=0, om=10, o0=32, bk=6, od=0, smode=0, Df=5, f0=0, f1=200, tf=0, nt=1, pm=0, osc=0, exm=0, exo=0, pcap=3, pth=16, psl=6, nacc=1, nA=2, t16=1, perm=0):
    WNT = " nt" if wnt else ""
    KVNT = " nt" if kvnt else ""
    a = Asm()
    kname = NAME + "_kernel"
    a.raw(".globl %s\n.p2align 8\n.type %s,@function\n%s:" % (kname, kname, kname))
    SK, SV, SWQ, SWO, SX, SWS, SOUT = 44, 48, 52, 56, 60, 64, 68
    s_br, s_h, s_b, s_half, s_wave = 4, 5, 6, 7, 8
    s_kvbase, s_off, s_wqoff, s_wooff, s_tmp = 9, 10, 11, 12, 13
    s_grp, s_p = 14, 15
    s_m1, s_m0 = 76, 78
    s_log2e, s_scale = 80, 81
    s_rot = 3
    s_kvo = 82
    s_spin = 90
    s_inbox, s_id, s_outoff, s_ex, s_ybase, s_mx, s_tag = 91, 92, 93, 94, 95, 96, 97
    s_ep, s_tagb = 72, 73
    s_epo = 74
    s_t16 = 75 if t16 else s_tagb
    s_mh = 42
    s_ts = 16
    NC = 512 // CW
    IB = 64 * CW * 4
    lgCW = CW.bit_length() - 1
    nst = [0]
    def stamp():
        if not ts: return
        k = nst[0]; nst[0] += 1
        a.i("s_memrealtime s[%d:%d]" % (s_ts + 2 * k, s_ts + 2 * k + 1))
    a.i("s_cmp_ge_u32 s2, 256")
    a.i("s_cbranch_scc1 L_end1")
    a.i("s_load_dwordx16 s[16:31], s[0:1], 0")
    a.i("s_load_dwordx8 s[32:39], s[0:1], 64")
    a.i("s_load_dwordx2 s[40:41], s[0:1], 96")
    if ts or pad: a.i("s_memrealtime s[98:99]")
    if mapn == 1:
        a.i("s_bfe_u32 s%d, s2, 0x10002" % s_br)
        a.i("s_and_b32 s%d, s2, 3" % s_tmp)
        a.i("s_lshl_b32 s%d, s%d, 3" % (s_tmp, s_tmp))
        a.i("s_lshr_b32 s%d, s2, 5" % s_h)
        a.i("s_or_b32 s%d, s%d, s%d" % (s_h, s_h, s_tmp))
    else:
        a.i("s_lshr_b32 s%d, s2, 7" % s_br)
        a.i("s_bfe_u32 s%d, s2, 0x20005" % s_tmp)
        a.i("s_lshl_b32 s%d, s%d, 3" % (s_tmp, s_tmp))
        a.i("s_and_b32 s%d, s2, 7" % s_h)
        if perm:
            a.i("s_lshl_b32 s%d, s%d, 2" % (s_h, s_h))
            a.i("s_lshr_b32 s%d, 0x%x, s%d" % (s_h, perm, s_h))
            a.i("s_and_b32 s%d, s%d, 7" % (s_h, s_h))
        a.i("s_or_b32 s%d, s%d, s%d" % (s_h, s_h, s_tmp))
    a.i("s_bfe_u32 s%d, s2, 0x10004" % s_b)
    a.i("s_bfe_u32 s%d, s2, 0x10003" % s_half)
    v_lane, v_kv, v_wq, v_wo, v_x = 1, 2, 3, 4, 5
    v_g, v_c = 6, 7
    v_mask = 8
    v_A = [12, 16]
    v_D = 20
    v_q = 24
    v_s = [28, 29]
    v_t0 = 30
    v_T = 40
    v_ldsD, v_zero, v_y, v_ord, v_ldsY, v_tid4, v_exa, v_f = 56, 57, 58, 59, 60, 61, 62, 63
    v_e = 36
    v_ff = 38
    v_stw, v_str = 34, 35
    SLOT0 = 64
    NSLOT = (256 - SLOT0) // 4
    S = {"free": list(range(NSLOT)), "where": {}, "kvo": 1, "issued": 0, "D": D}
    slot = lambda k: SLOT0 + 4 * k
    a.i("v_and_b32 v%d, 63, v0" % v_lane)
    a.i("v_lshrrev_b32 v%d, 6, v0" % v_t0)
    a.i("v_readfirstlane_b32 s%d, v%d" % (s_wave, v_t0))
    a.i("v_lshrrev_b32 v%d, 4, v%d" % (v_g, v_lane))
    a.i("v_and_b32 v%d, 15, v%d" % (v_c, v_lane))
    a.i("s_lshl_b32 s%d, s%d, 26" % (s_kvbase, s_b))
    a.i("s_lshl_b32 s%d, s%d, 21" % (s_tmp, s_h))
    a.i("s_add_u32 s%d, s%d, s%d" % (s_kvbase, s_kvbase, s_tmp))
    a.i("s_lshl_b32 s%d, s%d, 18" % (s_tmp, s_half))
    a.i("s_add_u32 s%d, s%d, s%d" % (s_kvbase, s_kvbase, s_tmp))
    a.i("s_add_u32 s%d, s%d, 0x%x" % (s_kvbase, s_kvbase, 6144 * 256))
    a.i("s_lshl_b32 s%d, s%d, 10" % (s_off, s_b))
    a.i("s_lshl_b32 s%d, s%d, 8" % (s_wqoff, s_h))
    a.i("v_and_b32 v%d, 0x1c0, v0" % v_wq)
    a.i("v_add_u32 v%d, v%d, v%d" % (v_wq, v_wq, v_g))
    a.i("v_lshl_add_u32 v%d, v%d, 2, v%d" % (v_x, v_c, v_wq))
    a.i("v_lshlrev_b32 v%d, 1, v%d" % (v_x, v_x))
    a.i("v_lshlrev_b32 v%d, 13, v%d" % (v_wq, v_wq))
    a.i("v_lshl_add_u32 v%d, v%d, 4, v%d" % (v_wq, v_c, v_wq))
    a.i("v_lshlrev_b32 v%d, 15, v%d" % (v_kv, v_t0))
    a.i("v_lshl_add_u32 v%d, v%d, 4, v%d" % (v_kv, v_lane, v_kv))
    a.i("s_lshl_b32 s%d, s2, 3" % s_rot)
    a.i("s_add_u32 s%d, s%d, s%d" % (s_rot, s_rot, s_wave))
    a.i("s_add_u32 s%d, s%d, 1" % (s_rot, s_rot))
    a.i("s_mul_i32 s%d, s%d, 0x9e3779b1" % (s_rot, s_rot))
    a.i("s_lshr_b32 s%d, s%d, 15" % (s_tmp, s_rot))
    a.i("s_xor_b32 s%d, s%d, s%d" % (s_rot, s_rot, s_tmp))
    a.i("s_mul_i32 s%d, s%d, 0x85ebca6b" % (s_rot, s_rot))
    a.i("s_lshr_b32 s%d, s%d, 13" % (s_rot, s_rot))
    a.i("s_and_b32 s%d, s%d, 0x7000" % (s_kvo, s_rot))
    a.i("s_add_u32 s%d, s%d, s%d" % (s_kvo, s_kvo, s_kvbase))
    for (r, sz) in ((SX, 2048), (SWQ, 0x400000), (SK, 0x8000000), (SV, 0x8000000), (SWO, 0x400000), (SWS, 0x400000), (SOUT, 4096)):
        a.i("s_mov_b32 s%d, 0x%x" % (r + 2, sz))
        a.i("s_mov_b32 s%d, 0x20000" % (r + 3))
    a.i("s_lshl_b32 s%d, s%d, 1" % (s_grp, s_br))
    a.i("s_or_b32 s%d, s%d, s%d" % (s_grp, s_grp, s_b))
    a.i("s_lshl_b32 s%d, s%d, 8" % (s_epo, s_grp))
    a.i("s_add_u32 s%d, s%d, 0x%x" % (s_epo, s_epo, WS_EP))
    a.i("s_cmp_eq_u32 s%d, 0" % s_br)
    a.i("s_waitcnt lgkmcnt(0)")
    if ts: a.i("s_memrealtime s[100:101]")
    def sel(r, A, B):
        a.i("s_cselect_b32 s%d, s%d, s%d" % (r, A, B))
        a.i("s_cselect_b32 s%d, s%d, s%d" % (r + 1, A + 1, B + 1))
    sel(SX, 16, 26)
    sel(SWQ, 22, 32)
    sel(SK, 18, 28)
    a.i("buffer_load_ushort v%d, v%d, s[%d:%d], s%d offen" % (v_x, v_x, SX, SX + 3, s_off), tag="x")
    sel(SV, 20, 30)
    sel(SWO, 24, 34)
    def load(key):
        kind, i = key
        if kind == "ex":
            a.i("buffer_load_dwordx2 v[%d:%d], v%d, s[%d:%d], s%d offen sc1" % (v_e, v_e + 1, v_exa, SWS, SWS + 3, s_ex), tag=key)
            return
        k = S["free"].pop(0); S["where"][key] = k
        if kind == "wq":
            if i > 0: a.i("s_add_u32 s%d, s%d, 32768" % (s_wqoff, s_wqoff))
            a.i("buffer_load_dwordx4 %s, v%d, s[%d:%d], s%d offen%s" % (vr(slot(k)), v_wq, SWQ, SWQ + 3, s_wqoff, WNT), tag=key)
        elif kind == "wo" and nt:
            if i > 0: a.i("s_add_u32 s%d, s%d, 8192" % (s_wooff, s_wooff))
            a.i("buffer_load_dwordx4 %s, v%d, s[%d:%d], s%d offen%s" % (vr(slot(k)), v_wo, SWO, SWO + 3, s_wooff, WNT), tag=key)
        elif kind == "wo":
            if i > 0 and i % 4 == 0: a.i("s_add_u32 s%d, s%d, 4096" % (s_wooff, s_wooff))
            a.i("buffer_load_dwordx4 %s, v%d, s[%d:%d], s%d offen offset:%d%s" % (vr(slot(k)), v_wo, SWO, SWO + 3, s_wooff, (i % 4) * 256, WNT), tag=key)
        else:
            j = i // 4
            if j >= S["kvo"]:
                a.i("s_add_u32 s%d, s%d, 4096" % (s_rot, s_rot))
                a.i("s_and_b32 s%d, s%d, 0x7000" % (s_kvo + j, s_rot))
                a.i("s_add_u32 s%d, s%d, s%d" % (s_kvo + j, s_kvo + j, s_kvbase))
                S["kvo"] = j + 1
            r = SK if kind == "k" else SV
            a.i("buffer_load_dwordx4 %s, v%d, s[%d:%d], s%d offen offset:%d%s" % (vr(slot(k)), v_kv, r, r + 3, s_kvo + j, (i % 4) * 1024, KVNT), tag=key)
    KV = [("k", i) for i in range(32)] + [("v", i) for i in range(32)]
    before = {}
    for i in range(16):
        before.setdefault(q0 + i * qm // 10, []).append(("wq", i))
        before.setdefault(64 if i >= 16 - od else o0 + i * om // 10, []).append(("wo", i))
    before.setdefault(32 + exi, []).append(("ex", 0))
    assert max(before) <= 64
    L = []
    for n, k in enumerate(KV):
        L += before.get(n, []); L.append(k)
    L += before.get(64, [])
    idx = {k: n for n, k in enumerate(L)}
    def issue_upto(n):
        while S["issued"] <= min(n, len(L) - 1) and S["free"]:
            load(L[S["issued"]]); S["issued"] += 1
    S["pos"] = 0
    def adv():
        key = L[S["pos"]]
        assert S["pos"] < S["issued"], key
        a.wait_vm(key)
        S["pos"] += 1
    def refill():
        issue_upto(reach(S["pos"] - 1, win(S["pos"] - 1)))
    def need(key):
        while S["pos"] <= idx[key]:
            adv()
            if S["pos"] <= idx[key]: refill()
    cum = [0]
    for k in L: cum.append(cum[-1] + (ww if k[0] in ("wq", "wo") else 0 if k[0] == "ex" else 4))
    def reach(n, d):
        m = n
        while m + 1 < len(L) and cum[m + 2] - cum[n + 1] <= 4 * d: m += 1
        return m
    def win(n):
        if De and n >= len(L) - Xe: return De
        if S.get("fast") and f0 <= n < f1: return Df
        return S["D"]
    def done(key):
        S["free"].append(S["where"].pop(key))
        refill()
    issue_upto(1)
    a.i("s_load_dword s%d, s[40:41], s%d" % (s_ep, s_epo))
    for (r, A) in ((SWS, 40), (SOUT, 36)):
        a.i("s_mov_b32 s%d, s%d" % (r, A)); a.i("s_mov_b32 s%d, s%d" % (r + 1, A + 1))
    issue_upto(reach(-1, D0 or D))
    if fine: stamp()
    a.i("s_lshl_b32 s%d, s%d, 1" % (s_p, s_h))
    a.i("s_or_b32 s%d, s%d, s%d" % (s_p, s_p, s_half))
    a.i("s_lshl_b32 s%d, s%d, 6" % (s_id, s_grp))
    a.i("s_add_u32 s%d, s%d, s%d" % (s_id, s_id, s_p))
    a.i("s_lshl_b32 s%d, s%d, 17" % (s_ybase, s_grp))
    a.i("s_lshl_b32 s%d, s%d, 11" % (s_inbox, s_p))
    a.i("s_add_u32 s%d, s%d, s%d" % (s_inbox, s_inbox, s_ybase))
    a.i("s_lshl_b32 s%d, s%d, %d" % (s_tmp, s_p, lgCW + 2))
    a.i("s_add_u32 s%d, s%d, s%d" % (s_ybase, s_ybase, s_tmp))
    a.i("v_lshlrev_b32 v%d, 2, v0" % v_tid4)
    if nt:
        a.i("v_and_b32 v%d, 0x1c3, v0" % (v_t0 + 2))
        a.i("v_bfe_u32 v%d, v0, 2, 2" % (v_t0 + 1))
        a.i("v_lshl_add_u32 v%d, v%d, 4, v%d" % (v_t0 + 2, v_t0 + 1, v_t0 + 2))
        a.i("v_bfe_u32 v%d, v0, 5, 1" % (v_t0 + 1))
        a.i("v_lshl_add_u32 v%d, v%d, 2, v%d" % (v_t0 + 2, v_t0 + 1, v_t0 + 2))
        a.i("v_bfe_u32 v%d, v0, 4, 1" % (v_t0 + 1))
        a.i("v_lshl_add_u32 v%d, v%d, 3, v%d" % (v_t0 + 2, v_t0 + 1, v_t0 + 2))
        a.i("v_lshrrev_b32 v%d, %d, v%d" % (v_y, lgCW, v_t0 + 2))
        a.i("v_lshlrev_b32 v%d, %d, v%d" % (v_y, lgCW + 8, v_y))
        a.i("v_and_b32 v%d, %d, v%d" % (v_t0 + 1, CW - 1, v_t0 + 2))
        a.i("v_lshl_add_u32 v%d, v%d, 2, v%d" % (v_y, v_t0 + 1, v_y))
    else:
        a.i("v_lshrrev_b32 v%d, %d, v0" % (v_y, lgCW))
        a.i("v_lshlrev_b32 v%d, %d, v%d" % (v_y, lgCW + 8, v_y))
        a.i("v_and_b32 v%d, %d, v%d" % (v_t0 + 1, CW * 4 - 1, v_tid4))
        a.i("v_add_u32 v%d, v%d, v%d" % (v_y, v_y, v_t0 + 1))
    a.i("s_lshr_b32 s%d, s%d, 1" % (s_ex, s_id))
    a.i("s_lshl_b32 s%d, s%d, 10" % (s_ex, s_ex))
    a.i("s_add_u32 s%d, s%d, 0x%x" % (s_ex, s_ex, WS_EX + exo))
    a.i("v_lshlrev_b32 v%d, 6, v%d" % (v_exa, v_c))
    a.i("s_lshl_b32 s%d, s%d, 3" % (s_tmp, s_half))
    a.i("s_add_u32 s%d, s%d, s%d" % (s_tmp, s_tmp, s_wave))
    a.i("s_lshl_b32 s%d, s%d, 6" % (s_tmp, s_tmp))
    a.i("v_mov_b32 v%d, s%d" % (v_f, s_tmp))
    if exm == 1:
        a.i("v_and_b32 v%d, 3, v0" % (v_t0 + 1))
        a.i("v_lshl_add_u32 v%d, v%d, 4, v%d" % (v_f, v_t0 + 1, v_f))
    a.i("v_mov_b32 v%d, 0" % v_zero)
    a.i("v_mov_b32 v%d, 0xffffff00" % v_ff)
    a.i("s_lshl_b32 s%d, s%d, 17" % (s_wooff, s_h))
    if nt:
        a.i("v_lshrrev_b32 v%d, 3, v%d" % (v_wo, v_lane))
        a.i("v_lshlrev_b32 v%d, 10, v%d" % (v_wo, v_wo))
        a.i("v_lshl_add_u32 v%d, v%d, 7, v%d" % (v_wo, v_t0, v_wo))
        a.i("v_and_b32 v%d, 7, v0" % (v_t0 + 1))
        a.i("v_lshl_add_u32 v%d, v%d, 4, v%d" % (v_wo, v_t0 + 1, v_wo))
        a.i("v_lshlrev_b32 v%d, 12, v%d" % (v_stw, v_t0))
        a.i("v_lshl_add_u32 v%d, v%d, 10, v%d" % (v_str, v_g, v_stw))
        a.i("v_lshl_add_u32 v%d, v%d, 5, v%d" % (v_str, v_c, v_str))
        a.i("v_lshl_add_u32 v%d, v%d, 4, v%d" % (v_stw, v_lane, v_stw))
        a.i("v_mul_u32_u24 v%d, 288, v%d" % (v_ldsY, v_t0))
        a.i("v_lshl_add_u32 v%d, v%d, 4, v%d" % (v_ldsY, v_c, v_ldsY))
        a.i("v_and_b32 v%d, 1, v%d" % (v_t0 + 1, v_g))
        a.i("v_lshl_add_u32 v%d, v%d, 3, v%d" % (v_ldsY, v_t0 + 1, v_ldsY))
        a.i("v_lshrrev_b32 v%d, 2, v%d" % (v_t0 + 1, v_c))
        a.i("v_and_b32 v%d, 1, v0" % v_ord)
        a.i("v_lshl_add_u32 v%d, v%d, 1, v%d" % (v_ord, v_t0 + 1, v_ord))
        a.i("v_mul_u32_u24 v%d, 288, v%d" % (v_ord, v_ord))
        a.i("v_lshl_add_u32 v%d, v%d, 4, v%d" % (v_ord, v_g, v_ord))
    else:
        a.i("v_lshl_add_u32 v%d, v%d, 4, v%d" % (v_ord, v_t0, v_g))
        a.i("v_lshlrev_b32 v%d, 10, v%d" % (v_wo, v_ord))
        a.i("v_lshl_add_u32 v%d, v%d, 4, v%d" % (v_wo, v_c, v_wo))
        a.i("v_and_b32 v%d, 3, v%d" % (v_t0 + 1, v_c))
        a.i("v_lshl_add_u32 v%d, v%d, 2, v%d" % (v_ord, v_t0 + 1, v_ord))
        a.i("v_lshlrev_b32 v%d, 2, v%d" % (v_ord, v_ord))
        a.i("v_add_u32 v%d, 0x2000, v%d" % (v_ord, v_ord))
    for (r, val) in ((s_m1, 0xcccccccc), (s_m0, 0xaaaaaaaa)):
        a.i("s_mov_b32 s%d, 0x%x" % (r, val)); a.i("s_mov_b32 s%d, 0x%x" % (r + 1, val))
    a.i("s_mov_b32 s%d, 0x%x" % (s_log2e, LOG2E))
    a.i("s_mov_b32 s%d, 0x%x" % (s_scale, SCALE))
    a.i("v_mov_b32 v%d, 0xffff" % (v_t0 + 2))
    a.i("v_mov_b32 v%d, 0xffff0000" % (v_t0 + 3))
    a.i("v_cndmask_b32 v%d, v%d, v%d, s[%d:%d]" % (v_t0 + 2, v_t0 + 2, v_t0 + 3, s_m0, s_m0 + 1))
    a.i("v_bfe_u32 v%d, v0, 1, 2" % (v_t0 + 3))
    for t in range(4):
        a.i("v_cmp_eq_u32 vcc, %d, v%d" % (t, v_t0 + 3))
        a.i("v_cndmask_b32 v%d, 0, v%d, vcc" % (v_mask + t, v_t0 + 2))
    a.i("v_and_b32 v%d, 1, v%d" % (v_t0 + 3, v_g))
    a.i("v_lshlrev_b32 v%d, 4, v%d" % (v_t0 + 3, v_t0 + 3))
    a.i("v_lshl_add_u32 v%d, v%d, 5, v%d" % (v_t0 + 3, v_c, v_t0 + 3))
    a.i("v_lshl_add_u32 v%d, v%d, 9, v%d" % (v_ldsD, v_t0, v_t0 + 3))
    if not nt: a.i("v_lshl_add_u32 v%d, v%d, 11, v%d" % (v_ldsY, v_t0, v_t0 + 3))
    a.i("s_lshl_b32 s%d, s%d, 11" % (s_outoff, s_b))
    a.i("s_lshl_b32 s%d, s%d, 10" % (s_tmp, s_br))
    a.i("s_add_u32 s%d, s%d, s%d" % (s_outoff, s_outoff, s_tmp))
    a.i("s_lshl_b32 s%d, s%d, 4" % (s_tmp, s_p))
    a.i("s_add_u32 s%d, s%d, s%d" % (s_outoff, s_outoff, s_tmp))
    if prio:
        a.i("s_cmp_lt_u32 s%d, 4" % s_wave)
        a.i("s_cbranch_scc1 L_noprio")
        a.i("s_setprio 1")
        a.label("L_noprio")
    def buildA(vec, i, A):
        for t in range(4):
            a.i("v_and_b32_dpp v%d, v%d, v%d row_newbcast:%d row_mask:0xf bank_mask:0xf" % (A + t, vec, v_mask + t, i))
    def gemv_block(vec, keys, first, hook=None):
        buildA(vec, 0, v_A[0])
        for i, key in enumerate(keys):
            if i + 1 < len(keys): buildA(vec, i + 1, v_A[(i + 1) % 2])
            need(key)
            c = "0" if (first and i == 0) else vr(v_D)
            a.i("v_mfma_f32_16x16x32_bf16 %s, %s, %s, %s" % (vr(v_D), vr(v_A[i % 2]), vr(slot(S["where"][key])), c))
            done(key)
            if hook: hook(key)
            if fine and key in (("wq", 0), ("wq", 7), ("v", 0), ("v", 15)): stamp()
    a.wait_vm("x")
    if fine: stamp()
    a.i("v_lshl_or_b32 v%d, v%d, 16, v%d" % (v_x, v_x, v_x))
    gemv_block(v_x, [("wq", i) for i in range(16)], True)
    stamp()
    issue_upto(reach(S["pos"] - 1, D + bq))
    a.i("ds_write_b128 v%d, %s" % (v_ldsD, vr(v_D)))
    a.i("v_lshlrev_b32 v%d, 3, v%d" % (v_t0, v_lane))
    a.i("v_and_b32 v%d, 0x700, v%d" % (v_t0 + 3, v_tid4))
    a.i("v_lshl_add_u32 v%d, v%d, 4, v%d" % (v_t0 + 3, v_c, v_t0 + 3))
    a.i("s_waitcnt lgkmcnt(0)")
    a.i("s_barrier")
    for w in range(8):
        a.i("ds_read_b64 v[%d:%d], v%d offset:%d" % (v_T + 2 * w, v_T + 2 * w + 1, v_t0, w * 512))
    a.i("s_add_u32 s%d, s%d, 1" % (s_tag, s_ep))
    a.i("s_and_b32 s%d, s%d, 0xff" % (s_tagb, s_tag))
    if t16: a.i("s_and_b32 s%d, s%d, 0xffff" % (s_t16, s_tag))
    a.i("s_waitcnt lgkmcnt(0)")
    for step in (1, 2, 4):
        for w in range(0, 8, 2 * step):
            a.i("v_add_f32 v%d, v%d, v%d" % (v_T + 2 * w, v_T + 2 * w, v_T + 2 * (w + step)))
            a.i("v_add_f32 v%d, v%d, v%d" % (v_T + 2 * w + 1, v_T + 2 * w + 1, v_T + 2 * (w + step) + 1))
    a.i("v_cvt_pk_bf16_f32 v%d, v%d, v%d" % (v_T, v_T, v_T + 1))
    a.i("ds_write_b32 v%d, v%d offset:4096" % (v_tid4, v_T))
    a.i("s_waitcnt lgkmcnt(0)")
    a.i("ds_read_b128 %s, v%d offset:4096" % (vr(v_q), v_t0 + 3))
    a.i("s_waitcnt lgkmcnt(0)")
    stamp()

    def stream_part(sfx):
        for blk in range(2):
            for i in range(16):
                a.i("v_mov_b32 v%d, 0" % (v_T + i))
            for i in range(16):
                key = ("k", blk * 16 + i)
                need(key)
                for t in range(4):
                    a.i("v_dot2c_f32_bf16 v%d, v%d, v%d" % (v_T + i, slot(S["where"][key]) + t, v_q + t))
                done(key)
                if idx[key] < S["pos"] - 1:
                    S["bk"] = S.get("bk", 0) + 1
                    if S["bk"] % bk == 0 and S["pos"] < S["issued"]:
                        adv(); refill()
            T = v_T
            for k in range(8):
                a.i("v_add_f32_dpp v%d, v%d, v%d row_ror:8 row_mask:0xf bank_mask:0x3" % (T + k, T + k, T + k))
            for k in range(8):
                a.i("v_add_f32_dpp v%d, v%d, v%d row_ror:8 row_mask:0xf bank_mask:0xc" % (T + k, T + k + 8, T + k + 8))
            for k in range(4):
                a.i("v_add_f32_dpp v%d, v%d, v%d row_half_mirror row_mask:0xf bank_mask:0x5" % (T + k, T + k, T + k))
            for k in range(4):
                a.i("v_add_f32_dpp v%d, v%d, v%d row_half_mirror row_mask:0xf bank_mask:0xa" % (T + k, T + k + 4, T + k + 4))
            for k in range(4):
                a.i("v_add_f32_dpp v%d, v%d, v%d quad_perm:[2,3,0,1] row_mask:0xf bank_mask:0xf" % (T + k, T + k, T + k))
            for k in range(2):
                a.i("v_cndmask_b32 v%d, v%d, v%d, s[%d:%d]" % (T + k, T + k, T + k + 2, s_m1, s_m1 + 1))
            for k in range(2):
                a.i("v_add_f32_dpp v%d, v%d, v%d quad_perm:[1,0,3,2] row_mask:0xf bank_mask:0xf" % (T + k, T + k, T + k))
            s = v_s[blk]
            a.i("v_cndmask_b32 v%d, v%d, v%d, s[%d:%d]" % (s, T, T + 1, s_m0, s_m0 + 1))
            a.i("v_cvt_pk_bf16_f32 v%d, v%d, v%d" % (s, s, s))
            a.i("v_and_b32 v%d, 0xffff0000, v%d" % (s, s))
            a.i("v_mul_f32 v%d, s%d, v%d" % (s, s_scale, s))
            a.i("v_cvt_pk_bf16_f32 v%d, v%d, v%d" % (s, s, s))
            a.i("v_and_b32 v%d, 0xffff0000, v%d" % (s, s))
        stamp()
        issue_upto(reach(S["pos"] - 1, S["D"] + bs))
        def wave_red(op, r):
            out = []
            for rot in (8, 4, 2, 1):
                out.append("%s_dpp v%d, v%d, v%d row_ror:%d row_mask:0xf bank_mask:0xf" % (op, r, r, r, rot))
            out.append("%s_dpp v%d, v%d, v%d row_bcast:15 row_mask:0xa bank_mask:0xf" % (op, r, r, r))
            out.append("%s_dpp v%d, v%d, v%d row_bcast:31 row_mask:0xc bank_mask:0xf" % (op, r, r, r))
            return out
        m, l = v_t0, v_t0 + 1
        a.i("v_max_f32 v%d, v%d, v%d" % (m, v_s[0], v_s[1]))
        for x in wave_red("v_max_f32", m): a.i(x)
        a.i("v_readlane_b32 s%d, v%d, 63" % (s_mx, m))
        for s in v_s: a.i("v_subrev_f32 v%d, s%d, v%d" % (s, s_mx, s))
        for s in v_s: a.i("v_mul_f32 v%d, s%d, v%d" % (s, s_log2e, s))
        for s in v_s: a.i("v_exp_f32 v%d, v%d" % (s, s))
        a.i("v_add_f32 v%d, v%d, v%d" % (l, v_s[0], v_s[1]))
        for s in v_s: a.i("v_cvt_pk_bf16_f32 v%d, v%d, v%d" % (s, s, s))
        stamp()
        fill = wave_red("v_add_f32", l)
        fill.append("v_or_b32 v%d, s%d, v%d" % (m, s_t16, m))
        fill.append("v_and_or_b32 v%d, v%d, v%d, s%d" % (l, l, v_ff, s_tagb))
        e0, e1, t1, t2 = v_e, v_e + 1, v_t0 + 2, v_t0 + 3
        S["won"] = 0
        def wo_tr():
            while nt and S["won"] < 16 and idx[("wo", S["won"])] < S["pos"]:
                n = S["won"]; S["won"] += 1
                a.i("ds_write_b128 v%d, %s offset:%d" % (v_stw, vr(slot(S["where"][("wo", n)])), 16384 + (n % 4) * 1024))
                if n % 4 == 3:
                    for nb in range(4):
                        r = slot(S["where"][("wo", n - 3 + nb)])
                        for hf in range(2):
                            a.i("ds_read_b64_tr_b16 v[%d:%d], v%d offset:%d" % (r + 2 * hf, r + 2 * hf + 1, v_str, 16384 + hf * 512 + nb * 8))
        def hook(key):
            wo_tr()
            if fill:
                a.i(fill.pop(0))
                if not fill:
                    a.i("s_mov_b32 exec_lo, 0")
                    if exm == 0:
                        a.i("s_mov_b32 exec_hi, 0x80000000")
                        a.i("buffer_store_dwordx2 v[%d:%d], v%d, s[%d:%d], s%d offen sc1" % (m, l, v_f, SWS, SWS + 3, s_ex), tag="exst")
                    elif exm == 1:
                        a.i("s_mov_b32 exec_hi, 0xf0000000")
                        a.i("buffer_store_dwordx4 v[%d:%d], v%d, s[%d:%d], s%d offen sc1" % (m, m + 3, v_f, SWS, SWS + 3, s_ex), tag="exst")
                    a.i("s_mov_b64 exec, -1")
            if key == ("v", exu):
                assert ("ex", 0) not in a.vm and idx[("ex", 0)] < S["issued"]
                a.i("s_mov_b32 s%d, %d" % (s_spin, NSPIN if exm < 2 else 0))
                a.label("L_ex" + sfx)
                if t16:
                    a.i("v_bitop3_b32 v%d, v%d, s%d, v%d bitop3:0x14" % (t1, e1, s_t16, v_ff))
                    a.i("v_bitop3_b32 v%d, v%d, s%d, v%d bitop3:0xf6" % (t1, t1, s_t16, e0))
                    a.i("v_and_b32 v%d, 0xffff, v%d" % (t1, t1))
                else:
                    a.i("v_xor_b32 v%d, s%d, v%d" % (t1, s_tagb, e0))
                    a.i("v_bitop3_b32 v%d, v%d, s%d, v%d bitop3:0xf6" % (t1, t1, s_tagb, e1))
                    a.i("v_and_b32 v%d, 0xff, v%d" % (t1, t1))
                a.i("v_cmp_ne_u32 vcc, 0, v%d" % t1)
                a.i("s_cbranch_vccz L_ex_ok" + sfx)
                a.i("s_sub_u32 s%d, s%d, 1" % (s_spin, s_spin))
                a.i("s_cbranch_scc1 L_ex_ok" + sfx)
                a.i("s_sleep 4")
                a.i("buffer_load_dwordx2 v[%d:%d], v%d, s[%d:%d], s%d offen sc1" % (v_e, v_e + 1, v_exa, SWS, SWS + 3, s_ex))
                a.vm.pop()
                a.i("s_waitcnt vmcnt(0)")
                a.i("s_branch L_ex" + sfx)
                a.label("L_ex_ok" + sfx)
                a.i("v_and_b32 v%d, 0xffff0000, v%d" % (e0, e0))
                a.i("v_max_f32_dpp v%d, v%d, v%d row_ror:8 row_mask:0xf bank_mask:0xf" % (t1, e0, e0))
                for rot in (4, 2, 1):
                    a.i("v_max_f32_dpp v%d, v%d, v%d row_ror:%d row_mask:0xf bank_mask:0xf" % (t1, t1, t1, rot))
                a.i("v_sub_f32 v%d, v%d, v%d" % (e0, e0, t1))
                a.i("v_sub_f32 v%d, s%d, v%d" % (t2, s_mx, t1))
                a.i("v_mul_f32 v%d, s%d, v%d" % (e0, s_log2e, e0))
                a.i("v_mul_f32 v%d, s%d, v%d" % (t2, s_log2e, t2))
                a.i("v_exp_f32 v%d, v%d" % (e0, e0))
                a.i("v_exp_f32 v%d, v%d" % (t2, t2))
                a.i("v_mul_f32 v%d, v%d, v%d" % (e0, e0, e1))
                for rot in (8, 4, 2, 1):
                    a.i("v_add_f32_dpp v%d, v%d, v%d row_ror:%d row_mask:0xf bank_mask:0xf" % (e0, e0, e0, rot))
                a.i("v_rcp_f32 v%d, v%d" % (e0, e0))
                a.i("v_mul_f32 v%d, v%d, v%d" % (v_f, t2, e0))
        gemv_block(v_s[0], [("v", i) for i in range(16)], True, hook)
        assert not fill
        gemv_block(v_s[1], [("v", i) for i in range(16, 32)], False, hook)
        stamp()
        issue_upto(len(L) - 1)
        if nt:
            assert S["won"] == 16
            for t in range(4): a.i("v_mul_f32 v%d, v%d, v%d" % (v_D + t, v_f, v_D + t))
            for e in range(2): a.i("v_cvt_pk_bf16_f32 v%d, v%d, v%d" % (v_D + e, v_D + 2 * e, v_D + 2 * e + 1))
            a.i("ds_write_b64 v%d, v[%d:%d] offset:8192" % (v_ldsY, v_D, v_D + 1))
            a.i("s_waitcnt lgkmcnt(0)")
            a.i("s_barrier")
            for kb in range(4): a.i("ds_read_b128 %s, v%d offset:%d" % (vr(v_T + 4 * kb), v_ord, 8192 + 64 * kb))
            if tf: stamp()
            for kb in range(4):
                a.i("s_waitcnt lgkmcnt(%d)" % (0 if tf else 3 - kb))
                if tf and kb == 0: stamp()
                for nb in range(4):
                    acc = 12 + 4 * nb
                    a.i("v_mfma_f32_16x16x32_bf16 %s, %s, %s, %s" % (vr(acc), vr(v_T + 4 * kb), vr(slot(S["where"][("wo", 4 * kb + nb)])), "0" if kb == 0 else vr(acc)))
            if tf: stamp()
        else:
            for t in range(4): a.i("v_mul_f32 v%d, v%d, v%d" % (v_D + t, v_f, v_D + t))
            a.i("ds_write_b128 v%d, %s offset:8192" % (v_ldsD, vr(v_D)))
            a.i("s_waitcnt lgkmcnt(0)")
            a.i("s_barrier")
            for w in range(0, 8, 2):
                a.i("ds_read2st64_b32 v[%d:%d], v%d offset0:%d offset1:%d" % (v_T + w, v_T + w + 1, v_ord, 2 * w, 2 * w + 2))
            a.i("s_waitcnt lgkmcnt(0)")
            for step in (1, 2, 4):
                for w in range(0, 8, 2 * step):
                    a.i("v_add_f32 v%d, v%d, v%d" % (v_T + w, v_T + w, v_T + w + step))
            v_o = v_s[0]
            a.i("v_cvt_pk_bf16_f32 v%d, v%d, v%d" % (v_o, v_T, v_T))
            buildA(v_o, 0, v_A[0])
            for ip in range(4):
                for cb in range(4):
                    c = "0" if ip == 0 else vr(v_T + 4 * cb)
                    need(("wo", 4 * ip + cb))
                    a.i("v_mfma_f32_16x16x32_bf16 %s, %s, %s, %s" % (vr(v_T + 4 * cb), vr(v_A[ip % 2]), vr(slot(S["where"][("wo", 4 * ip + cb)])), c))
                    if cb == 0 and ip < 3: buildA(v_o, ip + 1, v_A[(ip + 1) % 2])
            a.i("s_mov_b32 exec_hi, 0")
            for cb in range(4):
                a.i("ds_write_b128 v%d, %s offset:%d" % (v_ldsY, vr(v_T + 4 * cb), 16384 + cb * 512))
            a.i("s_mov_b32 exec_hi, -1")
            a.i("s_waitcnt lgkmcnt(0)")
            a.i("s_barrier")
    if smode:
        if smode & 1:
            a.i("s_lshr_b32 s%d, s%d, 8" % (s_tmp, SWQ))
            a.i("s_add_u32 s%d, s%d, s%d" % (s_tmp, s_tmp, s_h))
            a.i("s_and_b32 s%d, s%d, 3" % (s_tmp, s_tmp))
            a.i("s_cmp_eq_u32 s%d, 1" % s_tmp)
            a.i("s_cbranch_scc1 L_slow")
        if smode & 2:
            a.i("s_cmp_ge_u32 s%d, 4" % s_wave)
            a.i("s_cbranch_scc1 L_slow")
        S0 = copy.deepcopy(S); vm0 = list(a.vm); n0 = nst[0]
        S["fast"] = 1
        stream_part("_a")
        a.i("s_branch L_join")
        a.label("L_slow")
        a.i("s_nop 7")
        S.clear(); S.update(S0); a.vm = vm0; nst[0] = n0
        S["D"] = Ds or D
        stream_part("_b")
        a.label("L_join")
    else:
        stream_part("_a")
    if nt:
        for nb in range(4): a.i("v_add_f32 v%d, v%d, v%d" % (12 + 4 * nb, 12 + 4 * nb, 13 + 4 * nb))
        a.i("v_permlane32_swap_b32 v12, v16")
        a.i("v_permlane32_swap_b32 v20, v24")
        a.i("v_add_f32 v12, v12, v16")
        a.i("v_add_f32 v20, v20, v24")
        a.i("v_permlane16_swap_b32 v12, v20")
        a.i("v_add_f32 v12, v12, v20")
        a.i("v_and_or_b32 v12, v12, v%d, s%d" % (v_ff, s_tagb))
        a.i("buffer_store_dword v12, v%d, s[%d:%d], s%d offen sc1" % (v_y, SWS, SWS + 3, s_ybase), tag="y")
    else:
        for w in range(0, 8, 2):
            a.i("ds_read2st64_b32 v[%d:%d], v%d offset0:%d offset1:%d" % (v_T + w, v_T + w + 1, v_tid4, 64 + 8 * w, 64 + 8 * w + 8))
        a.i("s_waitcnt lgkmcnt(0)")
        for step in (1, 2, 4):
            for w in range(0, 8, 2 * step):
                a.i("v_add_f32 v%d, v%d, v%d" % (v_T + w, v_T + w, v_T + w + step))
        a.i("v_and_or_b32 v%d, v%d, v%d, s%d" % (v_T, v_T, v_ff, s_tagb))
        a.i("buffer_store_dword v%d, v%d, s[%d:%d], s%d offen sc1" % (v_T, v_y, SWS, SWS + 3, s_ybase), tag="y")
    stamp()
    END = "L_ts" if ts else "L_end1"
    if exp:
        a.i("s_waitcnt vmcnt(0)")
        a.i("s_branch L_ts")
    if NC < 64:
        a.i("s_and_b32 s%d, s%d, %d" % (s_tmp, s_p, 64 // NC - 1))
        a.i("s_cbranch_scc1 %s" % END)
    if pbar: a.i("s_barrier")
    a.i("s_cmp_lg_u32 s%d, 0" % s_wave)
    a.i("s_cbranch_scc1 %s" % END)
    a.vm = []
    NL = CW // 4
    vy, vt = 64, 128
    Q = CW // 4
    a.i("v_lshlrev_b32 v%d, 4, v%d" % (vt, v_lane))
    a.i("v_add_u32 v%d, 0x1000, v%d" % (vt + 1, vt))
    a.i("s_mov_b32 s%d, %d" % (s_spin, NSPIN))
    a.i("v_bfe_u32 v%d, v%d, 4, 1" % (vt + 2, v_lane))
    a.i("v_bfe_u32 v%d, v%d, 5, 1" % (vt + 3, v_lane))
    a.i("v_lshl_add_u32 v%d, v%d, 1, v%d" % (vt + 2, vt + 2, vt + 3))
    a.i("v_and_b32 v%d, %d, v%d" % (vt + 3, Q - 1, v_lane))
    a.i("v_lshl_add_u32 v%d, v%d, 2, v%d" % (vt + 2, vt + 3, vt + 2))
    a.i("v_lshlrev_b32 v%d, 1, v%d" % (vt + 2, vt + 2))
    if outw:
        a.i("buffer_load_ushort v%d, v%d, s[%d:%d], s%d offen" % (vt + 5, vt + 2, SOUT, SOUT + 3, s_outoff))
        a.vm = []
    if pm:
        s_mk = 44
        s_u = 60
        def ld(k):
            a.i("buffer_load_dwordx4 %s, v%d, s[%d:%d], s%d offen offset:%d sc1" % (vr(vy + 4 * k), vt + (k >> 2), SWS, SWS + 3, s_inbox, (k & 3) * 1024))
            a.vm = []
        for k in range(NL): ld(k)
        a.label("L_slowp")
        a.i("s_waitcnt vmcnt(0)")
        a.label("L_chk")
        ck = vt + 8
        for t in range(4):
            for k in range(NL):
                if t == 0: a.i("v_xor_b32 v%d, s%d, v%d" % (ck + k, s_tagb, vy + 4 * k))
                else: a.i("v_bitop3_b32 v%d, v%d, s%d, v%d bitop3:0xf6" % (ck + k, ck + k, s_tagb, vy + 4 * k + t))
        for k in range(NL): a.i("v_and_b32 v%d, 0xff, v%d" % (ck + k, ck + k))
        for k in range(NL): a.i("v_cmp_ne_u32 s[%d:%d], 0, v%d" % (s_mk + 2 * k, s_mk + 2 * k + 1, ck + k))
        a.i("s_or_b64 s[%d:%d], s[%d:%d], s[%d:%d]" % (s_u, s_u + 1, s_mk, s_mk + 1, s_mk + 2, s_mk + 3))
        for k in range(2, NL): a.i("s_or_b64 s[%d:%d], s[%d:%d], s[%d:%d]" % (s_u, s_u + 1, s_u, s_u + 1, s_mk + 2 * k, s_mk + 2 * k + 1))
        a.i("s_cbranch_scc0 L_poll_ok")
        for k in range(NL):
            a.i("s_mov_b64 exec, s[%d:%d]" % (s_mk + 2 * k, s_mk + 2 * k + 1))
            ld(k)
        a.i("s_mov_b64 exec, -1")
        a.i("s_sub_u32 s%d, s%d, 1" % (s_spin, s_spin))
        a.i("s_cbranch_scc1 L_poll_ok")
        a.i("s_bcnt1_i32_b64 s%d, s[%d:%d]" % (s_tmp, s_u, s_u + 1))
        a.i("s_waitcnt vmcnt(%d)" % (NL * pcap))
        a.i("s_cmp_le_u32 s%d, %d" % (s_tmp, pth))
        a.i("s_cbranch_scc1 L_chk")
        if psl: a.i("s_sleep %d" % psl)
        a.i("s_branch L_slowp")
    else:
        a.label("L_poll")
        for k in range(NL):
            a.i("buffer_load_dwordx4 %s, v%d, s[%d:%d], s%d offen offset:%d sc1" % (vr(vy + 4 * k), vt + (k >> 2), SWS, SWS + 3, s_inbox, (k & 3) * 1024), tag=("y", k))
        chk = vt + 4
        for k in range(NL):
            a.wait_vm(("y", k))
            for t in range(4):
                if k == 0 and t == 0: a.i("v_xor_b32 v%d, s%d, v%d" % (chk, s_tagb, vy))
                else: a.i("v_bitop3_b32 v%d, v%d, s%d, v%d bitop3:0xf6" % (chk, chk, s_tagb, vy + 4 * k + t))
            if k > 0:
                for t in range(4):
                    a.i("v_add_f32 v%d, v%d, v%d" % (vy + t, vy + t, vy + 4 * k + t))
        a.i("v_and_b32 v%d, 0xff, v%d" % (chk, chk))
        a.i("v_cmp_ne_u32 vcc, 0, v%d" % chk)
        a.i("s_cbranch_vccz L_poll_ok")
        a.i("s_sub_u32 s%d, s%d, 1" % (s_spin, s_spin))
        a.i("s_cbranch_scc1 L_poll_ok")
        if sleep: a.i("s_sleep %d" % sleep)
        a.i("s_branch L_poll")
    a.label("L_poll_ok")
    if tf: stamp()
    vacc = vy
    if pm:
        vacc = vt + 16
        for k in range(0, NL, 2):
            for t in range(4): a.i("v_add_f32 v%d, v%d, v%d" % (vacc + 2 * k + t, vy + 4 * k + t, vy + 4 * k + 4 + t))
        st_ = 2
        while st_ < NL:
            for k in range(0, NL, 2 * st_):
                for t in range(4): a.i("v_add_f32 v%d, v%d, v%d" % (vacc + 2 * k + t, vacc + 2 * k + t, vacc + 2 * (k + st_) + t))
            st_ *= 2
    a.i("v_permlane32_swap_b32 v%d, v%d" % (vacc, vacc + 1))
    a.i("v_permlane32_swap_b32 v%d, v%d" % (vacc + 2, vacc + 3))
    a.i("v_add_f32 v%d, v%d, v%d" % (vacc, vacc, vacc + 1))
    a.i("v_add_f32 v%d, v%d, v%d" % (vacc + 2, vacc + 2, vacc + 3))
    a.i("v_permlane16_swap_b32 v%d, v%d" % (vacc, vacc + 2))
    a.i("v_add_f32 v%d, v%d, v%d" % (vacc, vacc, vacc + 2))
    if Q <= 2: a.i("v_add_f32_dpp v%d, v%d, v%d quad_perm:[2,3,0,1] row_mask:0xf bank_mask:0xf" % (vacc, vacc, vacc))
    if Q <= 4: a.i("v_add_f32_dpp v%d, v%d, v%d row_ror:4 row_mask:0xf bank_mask:0xf" % (vacc, vacc, vacc))
    a.i("v_add_f32_dpp v%d, v%d, v%d row_ror:8 row_mask:0xf bank_mask:0xf" % (vacc, vacc, vacc))
    a.i("v_cvt_pk_bf16_f32 v%d, v%d, v%d" % (vacc, vacc, vacc))
    em = ((1 << Q) - 1) * 0x00010001
    a.i("s_mov_b32 exec_lo, 0x%08x" % em)
    a.i("s_mov_b32 exec_hi, 0x%08x" % em)
    a.i("buffer_store_short v%d, v%d, s[%d:%d], s%d offen%s" % (vacc, vt + 2, SOUT, SOUT + 3, s_outoff, ("", " sc1", " sc0 sc1", " nt")[osc]))
    a.i("s_cmp_lg_u32 s%d, 0" % s_p)
    a.i("s_cbranch_scc1 L_noep")
    a.i("s_mov_b64 exec, 1")
    a.i("v_mov_b32 v%d, s%d" % (vt + 4, s_tag))
    a.i("buffer_store_dword v%d, v%d, s[%d:%d], s%d offen%s" % (vt + 4, v_zero, SWS, SWS + 3, s_epo, ("", " sc1", " sc0 sc1", " nt")[osc]))
    a.label("L_noep")
    if pad:
        a.i("s_add_u32 s98, s98, %d" % pad)
        a.label("L_pad")
        a.i("s_memrealtime s[100:101]")
        a.i("s_waitcnt lgkmcnt(0)")
        a.i("s_sub_u32 s100, s100, s98")
        a.i("s_cmp_lt_i32 s100, 0")
        a.i("s_cbranch_scc1 L_pad")
    if ts:
        a.label("L_ts")
        a.i("s_nop 7")
        stamp()
        a.i("s_waitcnt lgkmcnt(0)")
        a.i("s_mov_b64 exec, 1")
        a.i("s_lshl_b32 s%d, s2, 3" % s_off)
        a.i("s_add_u32 s%d, s%d, s%d" % (s_off, s_off, s_wave))
        a.i("s_lshl_b32 s%d, s%d, 6" % (s_off, s_off))
        a.i("s_add_u32 s%d, s%d, 0x%x" % (s_off, s_off, WS_TS))
        a.i("v_mov_b32 v%d, s98" % (v_T))
        a.i("v_mov_b32 v%d, s100" % (v_T + 1))
        assert nst[0] <= 13
        print("stamps:", nst[0] + 2)
        for k in range(nst[0]):
            a.i("v_mov_b32 v%d, s%d" % (v_T + 2 + k, s_ts + 2 * k))
        a.i("s_getreg_b32 s%d, hwreg(HW_REG_XCC_ID)" % s_tmp)
        a.i("s_lshl_b32 s%d, s%d, 16" % (s_tmp, s_tmp))
        a.i("s_add_u32 s%d, s%d, s%d" % (s_tmp, s_tmp, s_id))
        a.i("v_mov_b32 v%d, s%d" % (v_T + 15, s_tmp))
        for k in range(4):
            a.i("buffer_store_dwordx4 %s, v%d, s[%d:%d], s%d offen offset:%d" % (vr(v_T + 4 * k), v_zero, SWS, SWS + 3, s_off, 16 * k))
    a.label("L_end1")
    a.i("s_endpgm")
    k1 = a.text() + kd(kname, 256, 102)
    head = HDR + "; @launch grid=(256,1,1) block=(512,1,1) lds=%d\n" % (49152 if nt else 32768)
    head += '.amdgcn_target "amdgcn-amd-amdhsa--gfx950"\n.text\n'
    return head + k1

if __name__ == "__main__":
    out = sys.argv[1]
    kw = {}
    for arg in sys.argv[2:]:
        k, v = arg.split("=")
        kw[k] = int(v, 0)
    open(out, "w").write(gen(**kw))
```

```python
import re

TRANS = ("v_exp_", "v_log_", "v_rcp_", "v_rsq_", "v_sqrt_", "v_sin_", "v_cos_")

def regs_of(tok):
    tok = tok.strip()
    tok = tok.replace("abs(", "").replace(")", "").lstrip("-").strip("|")
    m = re.fullmatch(r"([vsa])(\d+)", tok)
    if m:
        return {(m.group(1), int(m.group(2)))}
    m = re.fullmatch(r"([vsa])\[(\d+):(\d+)\]", tok)
    if m:
        return {(m.group(1), i) for i in range(int(m.group(2)), int(m.group(3)) + 1)}
    if tok in ("vcc", "vcc_lo", "vcc_hi"):
        return {("vcc", 0)}
    if tok in ("exec", "exec_lo", "exec_hi"):
        return {("exec", 0)}
    if tok == "m0":
        return {("m0", 0)}
    return set()

class Ins:
    __slots__ = ("text", "op", "kind", "wr", "rd", "srcc", "srcab", "dpp", "trans", "dl", "ws", "storedata", "passes", "lanesel")
    def __init__(self, text):
        self.text = text
        t = text.split(";")[0].strip()
        parts = t.split(None, 1)
        self.op = parts[0]
        rest = parts[1] if len(parts) > 1 else ""
        ops = [o.strip() for o in rest.split(",")] if rest else []
        ops2 = []
        depth = 0
        cur = ""
        for ch in rest:
            if ch == "[":
                depth += 1
            if ch == "]":
                depth -= 1
            if ch == "," and depth == 0:
                ops2.append(cur.strip()); cur = ""
            else:
                cur += ch
        if cur.strip():
            ops2.append(cur.strip())
        ops = ops2
        mods = ""
        if ops:
            last = ops[-1].split(None, 1)
            ops[-1] = last[0]
            mods = last[1] if len(last) > 1 else ""
        op = self.op
        self.wr = set(); self.rd = set(); self.srcc = set(); self.srcab = set()
        self.dpp = False; self.trans = False; self.dl = False; self.ws = 1
        self.storedata = set(); self.passes = 0; self.lanesel = set()
        R = [regs_of(o) for o in ops]
        if op == "s_nop":
            self.kind = "nop"; self.ws = int(ops[0], 0) + 1
        elif op.startswith("v_mfma"):
            self.kind = "mfma"
            self.wr = R[0]; self.srcab = R[1] | R[2]; self.srcc = R[3]; self.rd = self.srcab | self.srcc
            self.passes = 8 if "32x32" in op else 4
        elif op.startswith("v_smfmac"):
            self.kind = "mfma"
            self.wr = R[0]; self.srcab = R[1] | R[2] | R[3]; self.srcc = R[0]; self.rd = self.srcab | self.srcc
            self.passes = 8 if "32x32" in op else 4
        elif op.startswith("v_"):
            self.kind = "valu"
            self.dpp = ("_dpp" in op) or ("row_" in mods) or ("quad_perm" in mods) or ("wave_" in mods)
            self.trans = op.startswith(TRANS)
            self.dl = op.startswith("v_dot")
            if op.startswith("v_permlane") and "swap" in op:
                self.wr = R[0] | R[1]; self.rd = R[0] | R[1]
            elif op.startswith("v_cmp"):
                self.wr = R[0]; self.rd = set().union(*R[1:])
                assert not op.startswith("v_cmpx")
            elif op.startswith(("v_add_co", "v_sub_co", "v_addc_co", "v_subb_co")):
                self.wr = R[0] | R[1]; self.rd = set().union(*R[2:])
            else:
                self.wr = R[0]; self.rd = set().union(*R[1:]) if len(R) > 1 else set()
                if op.startswith(("v_dot2c", "v_fmac", "v_pk_fmac")) or self.dpp:
                    self.rd |= R[0]
                if op.startswith(("v_readlane", "v_writelane")):
                    self.lanesel = R[2]
                if op.startswith("v_cndmask") and len(R) == 3:
                    self.rd |= {("vcc", 0)}
        elif op.startswith(("buffer_", "global_", "flat_")):
            self.kind = "vmem"
            if op.startswith(("buffer_wbl2", "buffer_inv")):
                pass
            elif op.startswith("buffer_load"):
                if "lds" in mods.split():
                    self.rd = set().union(*R) | {("m0", 0)}
                else:
                    self.wr = R[0]; self.rd = set().union(*R[1:])
            elif op.startswith("buffer_store"):
                self.rd = set().union(*R)
                if "x3" in op or "x4" in op:
                    self.storedata = R[0]
            elif op.startswith("buffer_atomic"):
                self.rd = set().union(*R)
                if "sc0" in mods.split():
                    self.wr = R[0]
            elif op.startswith("global_load"):
                self.wr = R[0]; self.rd = set().union(*R[1:])
            elif op.startswith("global_store"):
                self.rd = set().union(*R)
                if "x3" in op or "x4" in op:
                    self.storedata = R[1]
            elif op.startswith("global_atomic"):
                if "sc0" in mods.split():
                    self.wr = R[0]; self.rd = set().union(*R[1:])
                else:
                    self.rd = set().union(*R)
            else:
                raise ValueError(text)
        elif op.startswith("ds_"):
            self.kind = "ds"
            if op.startswith(("ds_read", "ds_bpermute", "ds_permute", "ds_swizzle")) or "_rtn" in op:
                self.wr = R[0]; self.rd = set().union(*R[1:])
            else:
                self.rd = set().union(*R)
        elif op.startswith("s_"):
            self.kind = "salu"
            if op.startswith(("s_cmp", "s_cbranch", "s_branch", "s_waitcnt", "s_barrier", "s_endpgm", "s_sleep", "s_setprio", "s_bitcmp")):
                self.rd = set().union(*R) if R else set()
            else:
                self.wr = R[0] if R else set(); self.rd = set().union(*R[1:]) if len(R) > 1 else set()
                if "saveexec" in op:
                    self.wr |= {("exec", 0)}
        else:
            raise ValueError("unknown op " + text)

def need(p, c):
    n = 0
    vw = {r for r in p.wr if r[0] in ("v", "a")}
    sw = {r for r in p.wr if r[0] in ("s", "vcc")}
    if p.kind == "valu":
        if c.kind == "valu" and c.dpp and (vw & c.rd): n = max(n, 2)
        if c.kind == "mfma" and (vw & c.rd): n = max(n, 2)
        if c.kind == "valu" and c.op.startswith("v_permlane") and (vw & c.rd): n = max(n, 2)
        if c.kind == "valu" and c.op.startswith(("v_readlane", "v_readfirstlane")) and (vw & c.rd): n = max(n, 1)
        if p.trans and c.kind in ("valu", "mfma", "ds", "vmem") and (vw & (c.rd | c.wr)): n = max(n, 1)
        if p.dl:
            if c.op == p.op and c.kind == "valu" and not c.dpp:
                ab = c.rd - c.wr if c.op.startswith("v_dot2c") else None
                if ab is None:
                    n = max(n, 3) if (vw & c.rd) else n
                elif vw & ab: n = max(n, 3)
            elif vw & (c.rd | c.wr): n = max(n, 3)
        if sw:
            if c.kind == "valu" and (sw & c.rd): n = max(n, 2)
            if c.kind == "valu" and (sw & c.lanesel): n = max(n, 4)
            if c.kind == "vmem" and (sw & c.rd): n = max(n, 5)
            if c.kind == "salu" and (sw & c.rd): n = max(n, 1)
    if p.kind == "mfma":
        tab = {4: (8, 6, 3), 8: (12, 10, 7)}[p.passes]
        if c.kind in ("valu", "vmem", "ds") and (p.wr & (c.rd | c.wr)): n = max(n, tab[0])
        if c.kind == "mfma":
            if p.wr & c.srcab: n = max(n, tab[0])
            if (p.wr & c.srcc) and not (p.wr == c.srcc and p.passes == c.passes): n = max(n, tab[1])
            if (p.wr & c.wr) and not (p.wr == c.srcc): n = max(n, tab[0])
        if c.kind == "valu" and (p.srcc & c.wr): n = max(n, tab[2])
    if p.kind == "vmem" and p.storedata:
        if c.kind == "valu" and (p.storedata & c.wr): n = max(n, 2)
        elif p.storedata & c.wr: n = max(n, 1)
    if p.kind == "salu" and ("m0", 0) in p.wr and ("m0", 0) in c.rd and c.kind != "salu": n = max(n, 1)
    return n

class Asm:
    def __init__(self):
        self.lines = []
        self.vm = []
        self.nlabel = 0
        self.hist = []
    def raw(self, s):
        self.lines.append(s)
    def label(self, name):
        self.lines.append(name + ":")
    def newlabel(self, base="L"):
        self.nlabel += 1
        return "%s_%d" % (base, self.nlabel)
    def i(self, text, tag=None):
        ins = Ins(text)
        dist = 0
        req = 0
        for p in reversed(self.hist):
            r = need(p, ins) - dist
            if r > req: req = r
            dist += p.ws
            if dist >= 20: break
        while req > 0:
            k = min(req, 16)
            nop = Ins("s_nop %d" % (k - 1))
            self.lines.append("    " + nop.text)
            self.hist.append(nop)
            req -= k
        self.lines.append("    " + text)
        self.hist.append(ins)
        if len(self.hist) > 40: self.hist = self.hist[-40:]
        if ins.kind == "vmem" and not ins.op.startswith(("buffer_wbl2", "buffer_inv")):
            self.vm.append(tag)
            assert len(self.vm) <= 63, "too many outstanding vmem"
        return ins
    def flush_hazards(self, n=12):
        self.i("s_nop %d" % (n - 1))
    def wait_vm(self, tag, extra=""):
        if tag not in self.vm:
            if extra: self.i("s_waitcnt " + extra)
            return
        idx = len(self.vm) - 1 - self.vm[::-1].index(tag)
        n = len(self.vm) - 1 - idx
        self.i("s_waitcnt vmcnt(%d)%s" % (n, (" " + extra) if extra else ""))
        self.vm = self.vm[idx + 1:]
    def wait_vm_all(self):
        self.i("s_waitcnt vmcnt(0)")
        self.vm = []
    def text(self):
        return "\n".join(self.lines) + "\n"
```

```python
import sys, copy
from asmlib import Asm
from gen1 import NAME, HDR, vr, kd, LOG2E, SCALE

WS_TS = 2 << 20
WS_EX = 1 << 19
WS_EP = (1 << 19) + (1 << 17)

def gen(D=6, ts=0, mapn=1, sleep=2, NSPIN=20000, pad=0, kvnt=1, wnt=1, D0=0, bq=0, bs=0,
        De=0, Xe=0, fine=0, ww=4, kfirst=0, CW=16, exp=0, exi=22, exu=29, prio=0, Ds=0, outw=1, pbar=1, qm=10, q0=0, om=10, o0=32, bk=6, od=0, smode=0, Df=5, f0=0, f1=200, tf=0, nt=1, pm=0, osc=0, exm=0, exo=0, pcap=3, pth=16, psl=6, nacc=1, nA=2, t16=1, perm=0, pf=0, pw=8, pfx=8, pfl=6, pf2=0, iw=-1, iwf=1, ym=0, plm=0):
    WNT = " nt" if wnt else ""
    KVNT = " nt" if kvnt else ""
    a = Asm()
    kname = NAME + "_kernel"
    a.raw(".globl %s\n.p2align 8\n.type %s,@function\n%s:" % (kname, kname, kname))
    SK, SV, SWQ, SWO, SX, SWS, SOUT = 44, 48, 52, 56, 60, 64, 68
    s_br, s_h, s_b, s_half, s_wave = 4, 5, 6, 7, 8
    s_kvbase, s_off, s_wqoff, s_wooff, s_tmp = 9, 10, 11, 12, 13
    s_grp, s_p = 14, 15
    s_m1, s_m0 = 76, 78
    s_log2e, s_scale = 80, 81
    s_rot = 3
    s_kvo = 82
    s_spin = 90
    s_inbox, s_id, s_outoff, s_ex, s_ybase, s_mx, s_tag = 91, 92, 93, 94, 95, 96, 97
    s_ep, s_tagb = 72, 73
    s_epo = 74
    s_t16 = 75 if t16 else s_tagb
    s_mh = 42
    s_ts = 16
    NC = 512 // CW
    IB = 64 * CW * 4
    lgCW = CW.bit_length() - 1
    nst = [0]
    def stamp():
        if not ts: return
        k = nst[0]; nst[0] += 1
        a.i("s_memrealtime s[%d:%d]" % (s_ts + 2 * k, s_ts + 2 * k + 1))
    a.i("s_cmp_ge_u32 s2, 256")
    a.i("s_cbranch_scc1 L_end1")
    a.i("s_load_dwordx16 s[16:31], s[0:1], 0")
    a.i("s_load_dwordx8 s[32:39], s[0:1], 64")
    a.i("s_load_dwordx2 s[40:41], s[0:1], 96")
    if ts or pad: a.i("s_memrealtime s[98:99]")
    if mapn == 1:
        a.i("s_bfe_u32 s%d, s2, 0x10002" % s_br)
        a.i("s_and_b32 s%d, s2, 3" % s_tmp)
        a.i("s_lshl_b32 s%d, s%d, 3" % (s_tmp, s_tmp))
        a.i("s_lshr_b32 s%d, s2, 5" % s_h)
        a.i("s_or_b32 s%d, s%d, s%d" % (s_h, s_h, s_tmp))
    else:
        a.i("s_lshr_b32 s%d, s2, 7" % s_br)
        a.i("s_bfe_u32 s%d, s2, 0x20005" % s_tmp)
        a.i("s_lshl_b32 s%d, s%d, 3" % (s_tmp, s_tmp))
        a.i("s_and_b32 s%d, s2, 7" % s_h)
        if perm:
            a.i("s_lshl_b32 s%d, s%d, 2" % (s_h, s_h))
            a.i("s_lshr_b32 s%d, 0x%x, s%d" % (s_h, perm, s_h))
            a.i("s_and_b32 s%d, s%d, 7" % (s_h, s_h))
        a.i("s_or_b32 s%d, s%d, s%d" % (s_h, s_h, s_tmp))
    a.i("s_bfe_u32 s%d, s2, 0x10004" % s_b)
    a.i("s_bfe_u32 s%d, s2, 0x10003" % s_half)
    v_lane, v_kv, v_wq, v_wo, v_x = 1, 2, 3, 4, 5
    v_g, v_c = 6, 7
    v_mask = 8
    v_A = [12, 16]
    v_D = 20
    v_q = 24
    v_s = [28, 29]
    v_t0 = 30
    v_T = 40
    v_ldsD, v_zero, v_y, v_ord, v_ldsY, v_tid4, v_exa, v_f = 56, 57, 58, 59, 60, 61, 62, 63
    v_e = 36
    v_ff = 38
    v_stw, v_str = 34, 35
    SLOT0 = 64
    NSLOT = (256 - SLOT0) // 4
    S = {"free": list(range(NSLOT)), "where": {}, "kvo": 1, "issued": 0, "D": D}
    slot = lambda k: SLOT0 + 4 * k
    a.i("v_and_b32 v%d, 63, v0" % v_lane)
    a.i("v_lshrrev_b32 v%d, 6, v0" % v_t0)
    a.i("v_readfirstlane_b32 s%d, v%d" % (s_wave, v_t0))
    a.i("v_lshrrev_b32 v%d, 4, v%d" % (v_g, v_lane))
    a.i("v_and_b32 v%d, 15, v%d" % (v_c, v_lane))
    a.i("s_lshl_b32 s%d, s%d, 26" % (s_kvbase, s_b))
    a.i("s_lshl_b32 s%d, s%d, 21" % (s_tmp, s_h))
    a.i("s_add_u32 s%d, s%d, s%d" % (s_kvbase, s_kvbase, s_tmp))
    a.i("s_lshl_b32 s%d, s%d, 18" % (s_tmp, s_half))
    a.i("s_add_u32 s%d, s%d, s%d" % (s_kvbase, s_kvbase, s_tmp))
    a.i("s_add_u32 s%d, s%d, 0x%x" % (s_kvbase, s_kvbase, 6144 * 256))
    a.i("s_lshl_b32 s%d, s%d, 10" % (s_off, s_b))
    a.i("s_lshl_b32 s%d, s%d, 8" % (s_wqoff, s_h))
    a.i("v_and_b32 v%d, 0x1c0, v0" % v_wq)
    a.i("v_add_u32 v%d, v%d, v%d" % (v_wq, v_wq, v_g))
    a.i("v_lshl_add_u32 v%d, v%d, 2, v%d" % (v_x, v_c, v_wq))
    a.i("v_lshlrev_b32 v%d, 1, v%d" % (v_x, v_x))
    a.i("v_lshlrev_b32 v%d, 13, v%d" % (v_wq, v_wq))
    a.i("v_lshl_add_u32 v%d, v%d, 4, v%d" % (v_wq, v_c, v_wq))
    a.i("v_lshlrev_b32 v%d, 15, v%d" % (v_kv, v_t0))
    a.i("v_lshl_add_u32 v%d, v%d, 4, v%d" % (v_kv, v_lane, v_kv))
    a.i("s_lshl_b32 s%d, s2, 3" % s_rot)
    a.i("s_add_u32 s%d, s%d, s%d" % (s_rot, s_rot, s_wave))
    a.i("s_add_u32 s%d, s%d, 1" % (s_rot, s_rot))
    a.i("s_mul_i32 s%d, s%d, 0x9e3779b1" % (s_rot, s_rot))
    a.i("s_lshr_b32 s%d, s%d, 15" % (s_tmp, s_rot))
    a.i("s_xor_b32 s%d, s%d, s%d" % (s_rot, s_rot, s_tmp))
    a.i("s_mul_i32 s%d, s%d, 0x85ebca6b" % (s_rot, s_rot))
    a.i("s_lshr_b32 s%d, s%d, 13" % (s_rot, s_rot))
    a.i("s_and_b32 s%d, s%d, 0x7000" % (s_kvo, s_rot))
    a.i("s_add_u32 s%d, s%d, s%d" % (s_kvo, s_kvo, s_kvbase))
    for (r, sz) in ((SX, 2048), (SWQ, 0x400000), (SK, 0x8000000), (SV, 0x8000000), (SWO, 0x400000), (SWS, 0x400000), (SOUT, 4096)):
        a.i("s_mov_b32 s%d, 0x%x" % (r + 2, sz))
        a.i("s_mov_b32 s%d, 0x20000" % (r + 3))
    a.i("s_lshl_b32 s%d, s%d, 1" % (s_grp, s_br))
    a.i("s_or_b32 s%d, s%d, s%d" % (s_grp, s_grp, s_b))
    a.i("s_lshl_b32 s%d, s%d, 8" % (s_epo, s_grp))
    a.i("s_add_u32 s%d, s%d, 0x%x" % (s_epo, s_epo, WS_EP))
    a.i("s_cmp_eq_u32 s%d, 0" % s_br)
    a.i("s_waitcnt lgkmcnt(0)")
    if ts: a.i("s_memrealtime s[100:101]")
    def sel(r, A, B):
        a.i("s_cselect_b32 s%d, s%d, s%d" % (r, A, B))
        a.i("s_cselect_b32 s%d, s%d, s%d" % (r + 1, A + 1, B + 1))
    sel(SX, 16, 26)
    sel(SWQ, 22, 32)
    sel(SK, 18, 28)
    a.i("buffer_load_ushort v%d, v%d, s[%d:%d], s%d offen" % (v_x, v_x, SX, SX + 3, s_off), tag="x")
    sel(SV, 20, 30)
    sel(SWO, 24, 34)
    S["rsv"] = {}
    def pair():
        for k in S["free"]:
            if k + 1 in S["free"]: return k
        return None
    def can(key):
        if key[0] == "wo" and nt == 2:
            return pair() is not None if (key[1] // 4) % 2 == 0 else True
        return bool(S["free"])
    def load(key):
        kind, i = key
        if kind == "ex":
            a.i("buffer_load_dwordx2 v[%d:%d], v%d, s[%d:%d], s%d offen sc1" % (v_e, v_e + 1, v_exa, SWS, SWS + 3, s_ex), tag=key)
            return
        if kind == "iw":
            a.i("buffer_load_dword v%d, v%d, s[%d:%d], s%d offen%s" % (v_x, 39, SWS, SWS + 3, s_inbox, (" ", " sc1", " sc0 sc1")[iwf].rstrip()), tag=key)
            return
        if kind == "pf":
            a.i("buffer_load_dword v%d, v%d, s[%d:%d], s%d offen%s" % (v_x, 39, SV, SV + 3, 42 + i, KVNT), tag=key)
            return
        if kind == "wo" and nt == 2:
            if (i // 4) % 2 == 0:
                k = pair(); S["free"].remove(k); S["free"].remove(k + 1); S["rsv"][i + 4] = k + 1
            else: k = S["rsv"].pop(i)
            S["where"][key] = k
        else:
            k = S["free"].pop(0); S["where"][key] = k
        if kind == "wq":
            if i > 0: a.i("s_add_u32 s%d, s%d, 32768" % (s_wqoff, s_wqoff))
            a.i("buffer_load_dwordx4 %s, v%d, s[%d:%d], s%d offen%s" % (vr(slot(k)), v_wq, SWQ, SWQ + 3, s_wqoff, WNT), tag=key)
        elif kind == "wo" and nt:
            if i > 0: a.i("s_add_u32 s%d, s%d, 8192" % (s_wooff, s_wooff))
            a.i("buffer_load_dwordx4 %s, v%d, s[%d:%d], s%d offen%s" % (vr(slot(k)), v_wo, SWO, SWO + 3, s_wooff, WNT), tag=key)
        elif kind == "wo":
            if i > 0 and i % 4 == 0: a.i("s_add_u32 s%d, s%d, 4096" % (s_wooff, s_wooff))
            a.i("buffer_load_dwordx4 %s, v%d, s[%d:%d], s%d offen offset:%d%s" % (vr(slot(k)), v_wo, SWO, SWO + 3, s_wooff, (i % 4) * 256, WNT), tag=key)
        else:
            j = i // 4
            if j >= S["kvo"]:
                a.i("s_add_u32 s%d, s%d, 4096" % (s_rot, s_rot))
                a.i("s_and_b32 s%d, s%d, 0x7000" % (s_kvo + j, s_rot))
                a.i("s_add_u32 s%d, s%d, s%d" % (s_kvo + j, s_kvo + j, s_kvbase))
                S["kvo"] = j + 1
            r = SK if kind == "k" else SV
            a.i("buffer_load_dwordx4 %s, v%d, s[%d:%d], s%d offen offset:%d%s" % (vr(slot(k)), v_kv, r, r + 3, s_kvo + j, (i % 4) * 1024, KVNT), tag=key)
    KV = [("k", i) for i in range(32)] + [("v", i) for i in range(32)]
    before = {}
    for i in range(16):
        before.setdefault(q0 + i * qm // 10, []).append(("wq", i))
        before.setdefault(64 if i >= 16 - od else o0 + i * om // 10, []).append(("wo", i))
    before.setdefault(32 + exi, []).append(("ex", 0))
    if iw >= 0: before.setdefault(iw, []).append(("iw", 0))
    assert max(before) <= 64
    L = []
    for n, k in enumerate(KV):
        L += before.get(n, []); L.append(k)
    L += before.get(64, [])
    L += [("pf", i) for i in range(pf)]
    idx = {k: n for n, k in enumerate(L)}
    def issue_upto(n):
        while S["issued"] <= min(n, len(L) - 1) and can(L[S["issued"]]):
            load(L[S["issued"]]); S["issued"] += 1
    S["pos"] = 0
    def adv():
        key = L[S["pos"]]
        assert S["pos"] < S["issued"], key
        a.wait_vm(key)
        S["pos"] += 1
    def refill():
        issue_upto(reach(S["pos"] - 1, win(S["pos"] - 1)))
    def need(key):
        while S["pos"] <= idx[key]:
            adv()
            if S["pos"] <= idx[key]: refill()
    cum = [0]
    for k in L: cum.append(cum[-1] + (ww if k[0] in ("wq", "wo") else 0 if k[0] in ("ex", "iw") else pw if k[0] == "pf" else 4))
    def reach(n, d):
        m = n
        while m + 1 < len(L) and cum[m + 2] - cum[n + 1] <= 4 * d: m += 1
        return m
    def win(n):
        if De and n >= len(L) - Xe: return De
        if S.get("fast") and f0 <= n < f1: return Df
        return S["D"]
    def done(key):
        S["free"].append(S["where"].pop(key))
        refill()
    issue_upto(1)
    a.i("s_load_dword s%d, s[40:41], s%d" % (s_ep, s_epo))
    for (r, A) in ((SWS, 40), (SOUT, 36)):
        a.i("s_mov_b32 s%d, s%d" % (r, A)); a.i("s_mov_b32 s%d, s%d" % (r + 1, A + 1))
    issue_upto(reach(-1, D0 or D))
    if fine: stamp()
    if iw >= 0:
        a.i("v_lshrrev_b32 v39, 3, v0")
        a.i("v_lshlrev_b32 v39, 6, v39")
    if pf:
        for j in range(pf):
            px = pf2 if (pf2 and j == 1) else pfx
            if j == 0 or pf2:
                a.i("s_xor_b32 s43, s2, %d" % px)
                a.i("s_lshl_b32 s43, s43, 3")
                a.i("s_add_u32 s43, s43, s%d" % s_wave)
                a.i("s_add_u32 s43, s43, 1")
                a.i("s_mul_i32 s43, s43, 0x9e3779b1")
                a.i("s_lshr_b32 s%d, s43, 15" % s_tmp)
                a.i("s_xor_b32 s43, s43, s%d" % s_tmp)
                a.i("s_mul_i32 s43, s43, 0x85ebca6b")
                a.i("s_lshr_b32 s43, s43, 13")
                a.i("s_add_u32 s43, s43, 0x%x" % (0x7000 if pfl == 6 else 0x6000))
                a.i("s_xor_b32 s%d, s%d, 0x%x" % (s_tmp, s_kvbase, ((px >> 3) & 1) << 18 | ((px >> 4) & 1) << 26))
            else:
                a.i("s_sub_u32 s43, s43, 0x1000")
            if j == 0:
                a.i("s_and_b32 s42, s43, 0x7000")
                a.i("s_add_u32 s42, s42, s%d" % s_tmp)
            else:
                a.i("s_and_b32 s43, s43, 0x7000")
                a.i("s_add_u32 s43, s43, s%d" % s_tmp)
        a.i("v_lshlrev_b32 v39, 15, v%d" % v_t0)
        a.i("v_lshl_add_u32 v39, v%d, %d, v39" % (v_lane, pfl))
    a.i("s_lshl_b32 s%d, s%d, 1" % (s_p, s_h))
    a.i("s_or_b32 s%d, s%d, s%d" % (s_p, s_p, s_half))
    a.i("s_lshl_b32 s%d, s%d, 6" % (s_id, s_grp))
    a.i("s_add_u32 s%d, s%d, s%d" % (s_id, s_id, s_p))
    a.i("s_lshl_b32 s%d, s%d, 17" % (s_ybase, s_grp))
    a.i("s_lshl_b32 s%d, s%d, 11" % (s_inbox, s_p))
    a.i("s_add_u32 s%d, s%d, s%d" % (s_inbox, s_inbox, s_ybase))
    a.i("s_lshl_b32 s%d, s%d, %d" % (s_tmp, s_p, lgCW + 2))
    a.i("s_add_u32 s%d, s%d, s%d" % (s_ybase, s_ybase, s_tmp))
    a.i("v_lshlrev_b32 v%d, 2, v0" % v_tid4)
    if nt:
        a.i("v_and_b32 v%d, 0x1c3, v0" % (v_t0 + 2))
        a.i("v_bfe_u32 v%d, v0, 2, 2" % (v_t0 + 1))
        a.i("v_lshl_add_u32 v%d, v%d, 4, v%d" % (v_t0 + 2, v_t0 + 1, v_t0 + 2))
        a.i("v_bfe_u32 v%d, v0, 5, 1" % (v_t0 + 1))
        a.i("v_lshl_add_u32 v%d, v%d, 2, v%d" % (v_t0 + 2, v_t0 + 1, v_t0 + 2))
        a.i("v_bfe_u32 v%d, v0, 4, 1" % (v_t0 + 1))
        a.i("v_lshl_add_u32 v%d, v%d, 3, v%d" % (v_t0 + 2, v_t0 + 1, v_t0 + 2))
        a.i("v_lshrrev_b32 v%d, %d, v%d" % (v_y, lgCW, v_t0 + 2))
        a.i("v_lshlrev_b32 v%d, %d, v%d" % (v_y, lgCW + 8, v_y))
        a.i("v_and_b32 v%d, %d, v%d" % (v_t0 + 1, CW - 1, v_t0 + 2))
        a.i("v_lshl_add_u32 v%d, v%d, 2, v%d" % (v_y, v_t0 + 1, v_y))
    else:
        a.i("v_lshrrev_b32 v%d, %d, v0" % (v_y, lgCW))
        a.i("v_lshlrev_b32 v%d, %d, v%d" % (v_y, lgCW + 8, v_y))
        a.i("v_and_b32 v%d, %d, v%d" % (v_t0 + 1, CW * 4 - 1, v_tid4))
        a.i("v_add_u32 v%d, v%d, v%d" % (v_y, v_y, v_t0 + 1))
    a.i("s_lshr_b32 s%d, s%d, 1" % (s_ex, s_id))
    a.i("s_lshl_b32 s%d, s%d, 10" % (s_ex, s_ex))
    a.i("s_add_u32 s%d, s%d, 0x%x" % (s_ex, s_ex, WS_EX + exo))
    a.i("v_lshlrev_b32 v%d, 6, v%d" % (v_exa, v_c))
    a.i("s_lshl_b32 s%d, s%d, 3" % (s_tmp, s_half))
    a.i("s_add_u32 s%d, s%d, s%d" % (s_tmp, s_tmp, s_wave))
    a.i("s_lshl_b32 s%d, s%d, 6" % (s_tmp, s_tmp))
    a.i("v_mov_b32 v%d, s%d" % (v_f, s_tmp))
    if exm == 1:
        a.i("v_and_b32 v%d, 3, v0" % (v_t0 + 1))
        a.i("v_lshl_add_u32 v%d, v%d, 4, v%d" % (v_f, v_t0 + 1, v_f))
    a.i("v_mov_b32 v%d, 0" % v_zero)
    a.i("v_mov_b32 v%d, 0xffffff00" % v_ff)
    a.i("s_lshl_b32 s%d, s%d, 17" % (s_wooff, s_h))
    if nt:
        a.i("v_lshrrev_b32 v%d, 3, v%d" % (v_wo, v_lane))
        a.i("v_lshlrev_b32 v%d, 10, v%d" % (v_wo, v_wo))
        a.i("v_lshl_add_u32 v%d, v%d, 7, v%d" % (v_wo, v_t0, v_wo))
        a.i("v_and_b32 v%d, 7, v0" % (v_t0 + 1))
        a.i("v_lshl_add_u32 v%d, v%d, 4, v%d" % (v_wo, v_t0 + 1, v_wo))
        a.i("v_lshlrev_b32 v%d, 12, v%d" % (v_stw, v_t0))
        a.i("v_lshl_add_u32 v%d, v%d, 10, v%d" % (v_str, v_g, v_stw))
        a.i("v_lshl_add_u32 v%d, v%d, 5, v%d" % (v_str, v_c, v_str))
        a.i("v_lshl_add_u32 v%d, v%d, 4, v%d" % (v_stw, v_lane, v_stw))
    if nt == 2:
        a.i("v_mul_u32_u24 v%d, 288, v%d" % (v_ldsY, v_t0))
        a.i("v_lshl_add_u32 v%d, v%d, 3, v%d" % (v_ldsY, v_c, v_ldsY))
        a.i("v_and_b32 v%d, 1, v%d" % (v_t0 + 1, v_g))
        a.i("v_lshl_add_u32 v%d, v%d, 2, v%d" % (v_ldsY, v_t0 + 1, v_ldsY))
        a.i("v_add_u32 v%d, 0x2000, v%d" % (v_ldsY, v_ldsY))
        a.i("v_mul_u32_u24 v%d, 144, v%d" % (v_ord, v_c))
        a.i("v_lshl_add_u32 v%d, v%d, 4, v%d" % (v_ord, v_g, v_ord))
        a.i("v_and_b32 v39, 1, v0")
        a.i("v_mul_u32_u24 v39, 0xaaaa, v39")
        a.i("v_add_u32 v39, 0x4444, v39")
    elif nt:
        a.i("v_mul_u32_u24 v%d, 288, v%d" % (v_ldsY, v_t0))
        a.i("v_lshl_add_u32 v%d, v%d, 4, v%d" % (v_ldsY, v_c, v_ldsY))
        a.i("v_and_b32 v%d, 1, v%d" % (v_t0 + 1, v_g))
        a.i("v_lshl_add_u32 v%d, v%d, 3, v%d" % (v_ldsY, v_t0 + 1, v_ldsY))
        a.i("v_lshrrev_b32 v%d, 2, v%d" % (v_t0 + 1, v_c))
        a.i("v_and_b32 v%d, 1, v0" % v_ord)
        a.i("v_lshl_add_u32 v%d, v%d, 1, v%d" % (v_ord, v_t0 + 1, v_ord))
        a.i("v_mul_u32_u24 v%d, 288, v%d" % (v_ord, v_ord))
        a.i("v_lshl_add_u32 v%d, v%d, 4, v%d" % (v_ord, v_g, v_ord))
    else:
        a.i("v_lshl_add_u32 v%d, v%d, 4, v%d" % (v_ord, v_t0, v_g))
        a.i("v_lshlrev_b32 v%d, 10, v%d" % (v_wo, v_ord))
        a.i("v_lshl_add_u32 v%d, v%d, 4, v%d" % (v_wo, v_c, v_wo))
        a.i("v_and_b32 v%d, 3, v%d" % (v_t0 + 1, v_c))
        a.i("v_lshl_add_u32 v%d, v%d, 2, v%d" % (v_ord, v_t0 + 1, v_ord))
        a.i("v_lshlrev_b32 v%d, 2, v%d" % (v_ord, v_ord))
        a.i("v_add_u32 v%d, 0x2000, v%d" % (v_ord, v_ord))
    for (r, val) in ((s_m1, 0xcccccccc), (s_m0, 0xaaaaaaaa)):
        a.i("s_mov_b32 s%d, 0x%x" % (r, val)); a.i("s_mov_b32 s%d, 0x%x" % (r + 1, val))
    a.i("s_mov_b32 s%d, 0x%x" % (s_log2e, LOG2E))
    a.i("s_mov_b32 s%d, 0x%x" % (s_scale, SCALE))
    a.i("v_mov_b32 v%d, 0xffff" % (v_t0 + 2))
    a.i("v_mov_b32 v%d, 0xffff0000" % (v_t0 + 3))
    a.i("v_cndmask_b32 v%d, v%d, v%d, s[%d:%d]" % (v_t0 + 2, v_t0 + 2, v_t0 + 3, s_m0, s_m0 + 1))
    a.i("v_bfe_u32 v%d, v0, 1, 2" % (v_t0 + 3))
    for t in range(4):
        a.i("v_cmp_eq_u32 vcc, %d, v%d" % (t, v_t0 + 3))
        a.i("v_cndmask_b32 v%d, 0, v%d, vcc" % (v_mask + t, v_t0 + 2))
    a.i("v_and_b32 v%d, 1, v%d" % (v_t0 + 3, v_g))
    a.i("v_lshlrev_b32 v%d, 4, v%d" % (v_t0 + 3, v_t0 + 3))
    a.i("v_lshl_add_u32 v%d, v%d, 5, v%d" % (v_t0 + 3, v_c, v_t0 + 3))
    a.i("v_lshl_add_u32 v%d, v%d, 9, v%d" % (v_ldsD, v_t0, v_t0 + 3))
    if not nt: a.i("v_lshl_add_u32 v%d, v%d, 11, v%d" % (v_ldsY, v_t0, v_t0 + 3))
    a.i("s_lshl_b32 s%d, s%d, 11" % (s_outoff, s_b))
    a.i("s_lshl_b32 s%d, s%d, 10" % (s_tmp, s_br))
    a.i("s_add_u32 s%d, s%d, s%d" % (s_outoff, s_outoff, s_tmp))
    a.i("s_lshl_b32 s%d, s%d, 4" % (s_tmp, s_p))
    a.i("s_add_u32 s%d, s%d, s%d" % (s_outoff, s_outoff, s_tmp))
    if prio:
        a.i("s_cmp_lt_u32 s%d, 4" % s_wave)
        a.i("s_cbranch_scc1 L_noprio")
        a.i("s_setprio 1")
        a.label("L_noprio")
    def buildA(vec, i, A):
        for t in range(4):
            a.i("v_and_b32_dpp v%d, v%d, v%d row_newbcast:%d row_mask:0xf bank_mask:0xf" % (A + t, vec, v_mask + t, i))
    def gemv_block(vec, keys, first, hook=None):
        buildA(vec, 0, v_A[0])
        for i, key in enumerate(keys):
            if i + 1 < len(keys): buildA(vec, i + 1, v_A[(i + 1) % 2])
            need(key)
            c = "0" if (first and i == 0) else vr(v_D)
            a.i("v_mfma_f32_16x16x32_bf16 %s, %s, %s, %s" % (vr(v_D), vr(v_A[i % 2]), vr(slot(S["where"][key])), c))
            done(key)
            if hook: hook(key)
            if fine and key in (("wq", 0), ("wq", 7), ("v", 0), ("v", 15)): stamp()
    a.wait_vm("x")
    if fine: stamp()
    a.i("v_lshl_or_b32 v%d, v%d, 16, v%d" % (v_x, v_x, v_x))
    gemv_block(v_x, [("wq", i) for i in range(16)], True)
    stamp()
    issue_upto(reach(S["pos"] - 1, D + bq))
    a.i("ds_write_b128 v%d, %s" % (v_ldsD, vr(v_D)))
    a.i("v_lshlrev_b32 v%d, 3, v%d" % (v_t0, v_lane))
    a.i("v_and_b32 v%d, 0x700, v%d" % (v_t0 + 3, v_tid4))
    a.i("v_lshl_add_u32 v%d, v%d, 4, v%d" % (v_t0 + 3, v_c, v_t0 + 3))
    a.i("s_waitcnt lgkmcnt(0)")
    a.i("s_barrier")
    for w in range(8):
        a.i("ds_read_b64 v[%d:%d], v%d offset:%d" % (v_T + 2 * w, v_T + 2 * w + 1, v_t0, w * 512))
    a.i("s_add_u32 s%d, s%d, 1" % (s_tag, s_ep))
    a.i("s_and_b32 s%d, s%d, 0xff" % (s_tagb, s_tag))
    if t16: a.i("s_and_b32 s%d, s%d, 0xffff" % (s_t16, s_tag))
    a.i("s_waitcnt lgkmcnt(0)")
    for step in (1, 2, 4):
        for w in range(0, 8, 2 * step):
            a.i("v_add_f32 v%d, v%d, v%d" % (v_T + 2 * w, v_T + 2 * w, v_T + 2 * (w + step)))
            a.i("v_add_f32 v%d, v%d, v%d" % (v_T + 2 * w + 1, v_T + 2 * w + 1, v_T + 2 * (w + step) + 1))
    a.i("v_cvt_pk_bf16_f32 v%d, v%d, v%d" % (v_T, v_T, v_T + 1))
    a.i("ds_write_b32 v%d, v%d offset:4096" % (v_tid4, v_T))
    a.i("s_waitcnt lgkmcnt(0)")
    a.i("ds_read_b128 %s, v%d offset:4096" % (vr(v_q), v_t0 + 3))
    a.i("s_waitcnt lgkmcnt(0)")
    stamp()

    def stream_part(sfx):
        for blk in range(2):
            for i in range(16):
                a.i("v_mov_b32 v%d, 0" % (v_T + i))
            for i in range(16):
                key = ("k", blk * 16 + i)
                need(key)
                for t in range(4):
                    a.i("v_dot2c_f32_bf16 v%d, v%d, v%d" % (v_T + i, slot(S["where"][key]) + t, v_q + t))
                done(key)
                if idx[key] < S["pos"] - 1:
                    S["bk"] = S.get("bk", 0) + 1
                    if S["bk"] % bk == 0 and S["pos"] < S["issued"]:
                        adv(); refill()
            T = v_T
            for k in range(8):
                a.i("v_add_f32_dpp v%d, v%d, v%d row_ror:8 row_mask:0xf bank_mask:0x3" % (T + k, T + k, T + k))
            for k in range(8):
                a.i("v_add_f32_dpp v%d, v%d, v%d row_ror:8 row_mask:0xf bank_mask:0xc" % (T + k, T + k + 8, T + k + 8))
            for k in range(4):
                a.i("v_add_f32_dpp v%d, v%d, v%d row_half_mirror row_mask:0xf bank_mask:0x5" % (T + k, T + k, T + k))
            for k in range(4):
                a.i("v_add_f32_dpp v%d, v%d, v%d row_half_mirror row_mask:0xf bank_mask:0xa" % (T + k, T + k + 4, T + k + 4))
            for k in range(4):
                a.i("v_add_f32_dpp v%d, v%d, v%d quad_perm:[2,3,0,1] row_mask:0xf bank_mask:0xf" % (T + k, T + k, T + k))
            for k in range(2):
                a.i("v_cndmask_b32 v%d, v%d, v%d, s[%d:%d]" % (T + k, T + k, T + k + 2, s_m1, s_m1 + 1))
            for k in range(2):
                a.i("v_add_f32_dpp v%d, v%d, v%d quad_perm:[1,0,3,2] row_mask:0xf bank_mask:0xf" % (T + k, T + k, T + k))
            s = v_s[blk]
            a.i("v_cndmask_b32 v%d, v%d, v%d, s[%d:%d]" % (s, T, T + 1, s_m0, s_m0 + 1))
            a.i("v_cvt_pk_bf16_f32 v%d, v%d, v%d" % (s, s, s))
            a.i("v_and_b32 v%d, 0xffff0000, v%d" % (s, s))
            a.i("v_mul_f32 v%d, s%d, v%d" % (s, s_scale, s))
            a.i("v_cvt_pk_bf16_f32 v%d, v%d, v%d" % (s, s, s))
            a.i("v_and_b32 v%d, 0xffff0000, v%d" % (s, s))
        stamp()
        issue_upto(reach(S["pos"] - 1, S["D"] + bs))
        def wave_red(op, r):
            out = []
            for rot in (8, 4, 2, 1):
                out.append("%s_dpp v%d, v%d, v%d row_ror:%d row_mask:0xf bank_mask:0xf" % (op, r, r, r, rot))
            out.append("%s_dpp v%d, v%d, v%d row_bcast:15 row_mask:0xa bank_mask:0xf" % (op, r, r, r))
            out.append("%s_dpp v%d, v%d, v%d row_bcast:31 row_mask:0xc bank_mask:0xf" % (op, r, r, r))
            return out
        m, l = v_t0, v_t0 + 1
        a.i("v_max_f32 v%d, v%d, v%d" % (m, v_s[0], v_s[1]))
        for x in wave_red("v_max_f32", m): a.i(x)
        a.i("v_readlane_b32 s%d, v%d, 63" % (s_mx, m))
        for s in v_s: a.i("v_subrev_f32 v%d, s%d, v%d" % (s, s_mx, s))
        for s in v_s: a.i("v_mul_f32 v%d, s%d, v%d" % (s, s_log2e, s))
        for s in v_s: a.i("v_exp_f32 v%d, v%d" % (s, s))
        a.i("v_add_f32 v%d, v%d, v%d" % (l, v_s[0], v_s[1]))
        for s in v_s: a.i("v_cvt_pk_bf16_f32 v%d, v%d, v%d" % (s, s, s))
        stamp()
        fill = wave_red("v_add_f32", l)
        fill.append("v_or_b32 v%d, s%d, v%d" % (m, s_t16, m))
        fill.append("v_and_or_b32 v%d, v%d, v%d, s%d" % (l, l, v_ff, s_tagb))
        e0, e1, t1, t2 = v_e, v_e + 1, v_t0 + 2, v_t0 + 3
        S["won"] = 0
        def wo_tr():
            while nt and S["won"] < 16 and idx[("wo", S["won"])] < S["pos"]:
                n = S["won"]; S["won"] += 1
                a.i("ds_write_b128 v%d, %s offset:%d" % (v_stw, vr(slot(S["where"][("wo", n)])), 16384 + (n % 4) * 1024))
                if n % 4 == 3:
                    for nb in range(4):
                        r = slot(S["where"][("wo", n - 3 + nb)])
                        for hf in range(2):
                            a.i("ds_read_b64_tr_b16 v[%d:%d], v%d offset:%d" % (r + 2 * hf, r + 2 * hf + 1, v_str, 16384 + hf * 512 + nb * 8))
        def hook(key):
            wo_tr()
            if fill:
                a.i(fill.pop(0))
                if not fill:
                    a.i("s_mov_b32 exec_lo, 0")
                    if exm == 0:
                        a.i("s_mov_b32 exec_hi, 0x80000000")
                        a.i("buffer_store_dwordx2 v[%d:%d], v%d, s[%d:%d], s%d offen sc1" % (m, l, v_f, SWS, SWS + 3, s_ex), tag="exst")
                    elif exm == 1:
                        a.i("s_mov_b32 exec_hi, 0xf0000000")
                        a.i("buffer_store_dwordx4 v[%d:%d], v%d, s[%d:%d], s%d offen sc1" % (m, m + 3, v_f, SWS, SWS + 3, s_ex), tag="exst")
                    a.i("s_mov_b64 exec, -1")
            if nt == 2 and key == ("v", 28):
                assert S["issued"] >= idx[("v", 31)] + 1
                S["acc"] = [slot(S["free"].pop(0)) for _ in range(4)]
                for r in S["acc"]:
                    for e in (0, 2): a.i("v_mov_b64 v[%d:%d], 0" % (r + e, r + e + 1))
            if key == ("v", exu):
                assert ("ex", 0) not in a.vm and idx[("ex", 0)] < S["issued"]
                a.i("s_mov_b32 s%d, %d" % (s_spin, NSPIN if exm < 2 else 0))
                a.label("L_ex" + sfx)
                if t16:
                    a.i("v_bitop3_b32 v%d, v%d, s%d, v%d bitop3:0x14" % (t1, e1, s_t16, v_ff))
                    a.i("v_bitop3_b32 v%d, v%d, s%d, v%d bitop3:0xf6" % (t1, t1, s_t16, e0))
                    a.i("v_and_b32 v%d, 0xffff, v%d" % (t1, t1))
                else:
                    a.i("v_xor_b32 v%d, s%d, v%d" % (t1, s_tagb, e0))
                    a.i("v_bitop3_b32 v%d, v%d, s%d, v%d bitop3:0xf6" % (t1, t1, s_tagb, e1))
                    a.i("v_and_b32 v%d, 0xff, v%d" % (t1, t1))
                a.i("v_cmp_ne_u32 vcc, 0, v%d" % t1)
                a.i("s_cbranch_vccz L_ex_ok" + sfx)
                a.i("s_sub_u32 s%d, s%d, 1" % (s_spin, s_spin))
                a.i("s_cbranch_scc1 L_ex_ok" + sfx)
                a.i("s_sleep 4")
                a.i("buffer_load_dwordx2 v[%d:%d], v%d, s[%d:%d], s%d offen sc1" % (v_e, v_e + 1, v_exa, SWS, SWS + 3, s_ex))
                a.vm.pop()
                a.i("s_waitcnt vmcnt(0)")
                a.i("s_branch L_ex" + sfx)
                a.label("L_ex_ok" + sfx)
                if ts and not pf: a.i("s_sub_u32 s43, %d, s%d" % (NSPIN, s_spin))
                a.i("v_and_b32 v%d, 0xffff0000, v%d" % (e0, e0))
                a.i("v_max_f32_dpp v%d, v%d, v%d row_ror:8 row_mask:0xf bank_mask:0xf" % (t1, e0, e0))
                for rot in (4, 2, 1):
                    a.i("v_max_f32_dpp v%d, v%d, v%d row_ror:%d row_mask:0xf bank_mask:0xf" % (t1, t1, t1, rot))
                a.i("v_sub_f32 v%d, v%d, v%d" % (e0, e0, t1))
                a.i("v_sub_f32 v%d, s%d, v%d" % (t2, s_mx, t1))
                a.i("v_mul_f32 v%d, s%d, v%d" % (e0, s_log2e, e0))
                a.i("v_mul_f32 v%d, s%d, v%d" % (t2, s_log2e, t2))
                a.i("v_exp_f32 v%d, v%d" % (e0, e0))
                a.i("v_exp_f32 v%d, v%d" % (t2, t2))
                a.i("v_mul_f32 v%d, v%d, v%d" % (e0, e0, e1))
                for rot in (8, 4, 2, 1):
                    a.i("v_add_f32_dpp v%d, v%d, v%d row_ror:%d row_mask:0xf bank_mask:0xf" % (e0, e0, e0, rot))
                a.i("v_rcp_f32 v%d, v%d" % (e0, e0))
                a.i("v_mul_f32 v%d, v%d, v%d" % (v_f, t2, e0))
        gemv_block(v_s[0], [("v", i) for i in range(16)], True, hook)
        assert not fill
        gemv_block(v_s[1], [("v", i) for i in range(16, 32)], False, hook)
        stamp()
        issue_upto(len(L) - 1)
        if nt == 2:
            assert S["won"] == 16
            for t in range(4): a.i("v_mul_f32 v%d, v%d, v%d" % (v_D + t, v_f, v_D + t))
            for e in range(2): a.i("v_cvt_pk_bf16_f32 v%d, v%d, v%d" % (v_D + e, v_D + 2 * e, v_D + 2 * e + 1))
            a.i("ds_write2_b32 v%d, v%d, v%d offset0:0 offset1:36" % (v_ldsY, v_D, v_D + 1))
            a.i("s_waitcnt lgkmcnt(0)")
            a.i("s_barrier")
            for kk in range(2): a.i("ds_read_b128 %s, v%d offset:%d" % (vr(v_T + 4 * kk), v_ord, 8192 + 64 * kk))
            if tf: stamp()
            for kk in range(2):
                a.i("s_waitcnt lgkmcnt(%d)" % (0 if tf else 1 - kk))
                if tf and kk == 0: stamp()
                for nb in range(4):
                    a.i("v_smfmac_f32_16x16x64_bf16 %s, %s, %s, v39" % (vr(S["acc"][nb]), vr(v_T + 4 * kk), vr(slot(S["where"][("wo", 8 * kk + nb)]), 8)))
            if tf: stamp()
            for nb in range(4):
                r = S["acc"][nb]
                a.i("v_pk_add_f32 v[%d:%d], v[%d:%d], v[%d:%d]" % (12 + 4 * nb, 13 + 4 * nb, r, r + 1, r + 2, r + 3))
        elif nt:
            assert S["won"] == 16
            for t in range(4): a.i("v_mul_f32 v%d, v%d, v%d" % (v_D + t, v_f, v_D + t))
            for e in range(2): a.i("v_cvt_pk_bf16_f32 v%d, v%d, v%d" % (v_D + e, v_D + 2 * e, v_D + 2 * e + 1))
            a.i("ds_write_b64 v%d, v[%d:%d] offset:8192" % (v_ldsY, v_D, v_D + 1))
            a.i("s_waitcnt lgkmcnt(0)")
            a.i("s_barrier")
            for kb in range(4): a.i("ds_read_b128 %s, v%d offset:%d" % (vr(v_T + 4 * kb), v_ord, 8192 + 64 * kb))
            if tf: stamp()
            for kb in range(4):
                a.i("s_waitcnt lgkmcnt(%d)" % (0 if tf else 3 - kb))
                if tf and kb == 0: stamp()
                for nb in range(4):
                    acc = 12 + 4 * nb
                    a.i("v_mfma_f32_16x16x32_bf16 %s, %s, %s, %s" % (vr(acc), vr(v_T + 4 * kb), vr(slot(S["where"][("wo", 4 * kb + nb)])), "0" if kb == 0 else vr(acc)))
            if tf: stamp()
        else:
            for t in range(4): a.i("v_mul_f32 v%d, v%d, v%d" % (v_D + t, v_f, v_D + t))
            a.i("ds_write_b128 v%d, %s offset:8192" % (v_ldsD, vr(v_D)))
            a.i("s_waitcnt lgkmcnt(0)")
            a.i("s_barrier")
            for w in range(0, 8, 2):
                a.i("ds_read2st64_b32 v[%d:%d], v%d offset0:%d offset1:%d" % (v_T + w, v_T + w + 1, v_ord, 2 * w, 2 * w + 2))
            a.i("s_waitcnt lgkmcnt(0)")
            for step in (1, 2, 4):
                for w in range(0, 8, 2 * step):
                    a.i("v_add_f32 v%d, v%d, v%d" % (v_T + w, v_T + w, v_T + w + step))
            v_o = v_s[0]
            a.i("v_cvt_pk_bf16_f32 v%d, v%d, v%d" % (v_o, v_T, v_T))
            buildA(v_o, 0, v_A[0])
            for ip in range(4):
                for cb in range(4):
                    c = "0" if ip == 0 else vr(v_T + 4 * cb)
                    need(("wo", 4 * ip + cb))
                    a.i("v_mfma_f32_16x16x32_bf16 %s, %s, %s, %s" % (vr(v_T + 4 * cb), vr(v_A[ip % 2]), vr(slot(S["where"][("wo", 4 * ip + cb)])), c))
                    if cb == 0 and ip < 3: buildA(v_o, ip + 1, v_A[(ip + 1) % 2])
            a.i("s_mov_b32 exec_hi, 0")
            for cb in range(4):
                a.i("ds_write_b128 v%d, %s offset:%d" % (v_ldsY, vr(v_T + 4 * cb), 16384 + cb * 512))
            a.i("s_mov_b32 exec_hi, -1")
            a.i("s_waitcnt lgkmcnt(0)")
            a.i("s_barrier")
    if smode:
        if smode & 1:
            a.i("s_lshr_b32 s%d, s%d, 8" % (s_tmp, SWQ))
            a.i("s_add_u32 s%d, s%d, s%d" % (s_tmp, s_tmp, s_h))
            a.i("s_and_b32 s%d, s%d, 3" % (s_tmp, s_tmp))
            a.i("s_cmp_eq_u32 s%d, 1" % s_tmp)
            a.i("s_cbranch_scc1 L_slow")
        if smode & 2:
            a.i("s_cmp_ge_u32 s%d, 4" % s_wave)
            a.i("s_cbranch_scc1 L_slow")
        S0 = copy.deepcopy(S); vm0 = list(a.vm); n0 = nst[0]
        S["fast"] = 1
        stream_part("_a")
        a.i("s_branch L_join")
        a.label("L_slow")
        a.i("s_nop 7")
        S.clear(); S.update(S0); a.vm = vm0; nst[0] = n0
        S["D"] = Ds or D
        stream_part("_b")
        a.label("L_join")
    else:
        stream_part("_a")
    if nt:
        for nb in range(4): a.i("v_add_f32 v%d, v%d, v%d" % (12 + 4 * nb, 12 + 4 * nb, 13 + 4 * nb))
        a.i("v_permlane32_swap_b32 v12, v16")
        a.i("v_permlane32_swap_b32 v20, v24")
        a.i("v_add_f32 v12, v12, v16")
        a.i("v_add_f32 v20, v20, v24")
        a.i("v_permlane16_swap_b32 v12, v20")
        a.i("v_add_f32 v12, v12, v20")
        a.i("v_and_or_b32 v12, v12, v%d, s%d" % (v_ff, s_tagb))
        a.i("%s v12, v%d, s[%d:%d], s%d offen %s" % ("buffer_atomic_swap" if ym in (3, 4) else "buffer_store_dword", v_y, SWS, SWS + 3, s_ybase, ("sc1", "sc0 sc1", "sc1 nt", "sc1", "sc1 nt", "sc0 sc1 nt")[ym]), tag="y")
    else:
        for w in range(0, 8, 2):
            a.i("ds_read2st64_b32 v[%d:%d], v%d offset0:%d offset1:%d" % (v_T + w, v_T + w + 1, v_tid4, 64 + 8 * w, 64 + 8 * w + 8))
        a.i("s_waitcnt lgkmcnt(0)")
        for step in (1, 2, 4):
            for w in range(0, 8, 2 * step):
                a.i("v_add_f32 v%d, v%d, v%d" % (v_T + w, v_T + w, v_T + w + step))
        a.i("v_and_or_b32 v%d, v%d, v%d, s%d" % (v_T, v_T, v_ff, s_tagb))
        a.i("buffer_store_dword v%d, v%d, s[%d:%d], s%d offen sc1" % (v_T, v_y, SWS, SWS + 3, s_ybase), tag="y")
    stamp()
    END = "L_ts" if ts else "L_end1"
    if exp:
        a.i("s_waitcnt vmcnt(0)")
        a.i("s_branch L_ts")
    if NC < 64:
        a.i("s_and_b32 s%d, s%d, %d" % (s_tmp, s_p, 64 // NC - 1))
        a.i("s_cbranch_scc1 %s" % END)
    if pbar: a.i("s_barrier")
    a.i("s_cmp_lg_u32 s%d, 0" % s_wave)
    a.i("s_cbranch_scc1 %s" % END)
    a.vm = []
    NL = CW // 4
    vy, vt = 64, 128
    Q = CW // 4
    a.i("v_lshlrev_b32 v%d, 4, v%d" % (vt, v_lane))
    a.i("v_add_u32 v%d, 0x1000, v%d" % (vt + 1, vt))
    a.i("s_mov_b32 s%d, %d" % (s_spin, NSPIN))
    a.i("v_bfe_u32 v%d, v%d, 4, 1" % (vt + 2, v_lane))
    a.i("v_bfe_u32 v%d, v%d, 5, 1" % (vt + 3, v_lane))
    a.i("v_lshl_add_u32 v%d, v%d, 1, v%d" % (vt + 2, vt + 2, vt + 3))
    a.i("v_and_b32 v%d, %d, v%d" % (vt + 3, Q - 1, v_lane))
    a.i("v_lshl_add_u32 v%d, v%d, 2, v%d" % (vt + 2, vt + 3, vt + 2))
    a.i("v_lshlrev_b32 v%d, 1, v%d" % (vt + 2, vt + 2))
    if outw:
        a.i("buffer_load_ushort v%d, v%d, s[%d:%d], s%d offen" % (vt + 5, vt + 2, SOUT, SOUT + 3, s_outoff))
        a.vm = []
    if pm:
        s_mk = 44
        s_u = 60
        def ld(k):
            a.i("buffer_load_dwordx4 %s, v%d, s[%d:%d], s%d offen offset:%d %s" % (vr(vy + 4 * k), vt + (k >> 2), SWS, SWS + 3, s_inbox, (k & 3) * 1024, ("sc1", "sc0 sc1", "sc1 nt", "sc0 sc1 nt")[plm]))
            a.vm = []
        for k in range(NL): ld(k)
        a.label("L_slowp")
        a.i("s_waitcnt vmcnt(0)")
        a.label("L_chk")
        ck = vt + 8
        for t in range(4):
            for k in range(NL):
                if t == 0: a.i("v_xor_b32 v%d, s%d, v%d" % (ck + k, s_tagb, vy + 4 * k))
                else: a.i("v_bitop3_b32 v%d, v%d, s%d, v%d bitop3:0xf6" % (ck + k, ck + k, s_tagb, vy + 4 * k + t))
        for k in range(NL): a.i("v_and_b32 v%d, 0xff, v%d" % (ck + k, ck + k))
        for k in range(NL): a.i("v_cmp_ne_u32 s[%d:%d], 0, v%d" % (s_mk + 2 * k, s_mk + 2 * k + 1, ck + k))
        a.i("s_or_b64 s[%d:%d], s[%d:%d], s[%d:%d]" % (s_u, s_u + 1, s_mk, s_mk + 1, s_mk + 2, s_mk + 3))
        for k in range(2, NL): a.i("s_or_b64 s[%d:%d], s[%d:%d], s[%d:%d]" % (s_u, s_u + 1, s_u, s_u + 1, s_mk + 2 * k, s_mk + 2 * k + 1))
        a.i("s_cbranch_scc0 L_poll_ok")
        for k in range(NL):
            a.i("s_mov_b64 exec, s[%d:%d]" % (s_mk + 2 * k, s_mk + 2 * k + 1))
            ld(k)
        a.i("s_mov_b64 exec, -1")
        a.i("s_sub_u32 s%d, s%d, 1" % (s_spin, s_spin))
        a.i("s_cbranch_scc1 L_poll_ok")
        a.i("s_bcnt1_i32_b64 s%d, s[%d:%d]" % (s_tmp, s_u, s_u + 1))
        a.i("s_waitcnt vmcnt(%d)" % (NL * pcap))
        a.i("s_cmp_le_u32 s%d, %d" % (s_tmp, pth))
        a.i("s_cbranch_scc1 L_chk")
        if psl: a.i("s_sleep %d" % psl)
        a.i("s_branch L_slowp")
    else:
        a.label("L_poll")
        for k in range(NL):
            a.i("buffer_load_dwordx4 %s, v%d, s[%d:%d], s%d offen offset:%d sc1" % (vr(vy + 4 * k), vt + (k >> 2), SWS, SWS + 3, s_inbox, (k & 3) * 1024), tag=("y", k))
        chk = vt + 4
        for k in range(NL):
            a.wait_vm(("y", k))
            for t in range(4):
                if k == 0 and t == 0: a.i("v_xor_b32 v%d, s%d, v%d" % (chk, s_tagb, vy))
                else: a.i("v_bitop3_b32 v%d, v%d, s%d, v%d bitop3:0xf6" % (chk, chk, s_tagb, vy + 4 * k + t))
            if k > 0:
                for t in range(4):
                    a.i("v_add_f32 v%d, v%d, v%d" % (vy + t, vy + t, vy + 4 * k + t))
        a.i("v_and_b32 v%d, 0xff, v%d" % (chk, chk))
        a.i("v_cmp_ne_u32 vcc, 0, v%d" % chk)
        a.i("s_cbranch_vccz L_poll_ok")
        a.i("s_sub_u32 s%d, s%d, 1" % (s_spin, s_spin))
        a.i("s_cbranch_scc1 L_poll_ok")
        if sleep: a.i("s_sleep %d" % sleep)
        a.i("s_branch L_poll")
    a.label("L_poll_ok")
    if tf: stamp()
    vacc = vy
    if pm:
        vacc = vt + 16
        for k in range(0, NL, 2):
            for t in range(4): a.i("v_add_f32 v%d, v%d, v%d" % (vacc + 2 * k + t, vy + 4 * k + t, vy + 4 * k + 4 + t))
        st_ = 2
        while st_ < NL:
            for k in range(0, NL, 2 * st_):
                for t in range(4): a.i("v_add_f32 v%d, v%d, v%d" % (vacc + 2 * k + t, vacc + 2 * k + t, vacc + 2 * (k + st_) + t))
            st_ *= 2
    a.i("v_permlane32_swap_b32 v%d, v%d" % (vacc, vacc + 1))
    a.i("v_permlane32_swap_b32 v%d, v%d" % (vacc + 2, vacc + 3))
    a.i("v_add_f32 v%d, v%d, v%d" % (vacc, vacc, vacc + 1))
    a.i("v_add_f32 v%d, v%d, v%d" % (vacc + 2, vacc + 2, vacc + 3))
    a.i("v_permlane16_swap_b32 v%d, v%d" % (vacc, vacc + 2))
    a.i("v_add_f32 v%d, v%d, v%d" % (vacc, vacc, vacc + 2))
    if Q <= 2: a.i("v_add_f32_dpp v%d, v%d, v%d quad_perm:[2,3,0,1] row_mask:0xf bank_mask:0xf" % (vacc, vacc, vacc))
    if Q <= 4: a.i("v_add_f32_dpp v%d, v%d, v%d row_ror:4 row_mask:0xf bank_mask:0xf" % (vacc, vacc, vacc))
    a.i("v_add_f32_dpp v%d, v%d, v%d row_ror:8 row_mask:0xf bank_mask:0xf" % (vacc, vacc, vacc))
    a.i("v_cvt_pk_bf16_f32 v%d, v%d, v%d" % (vacc, vacc, vacc))
    em = ((1 << Q) - 1) * 0x00010001
    a.i("s_mov_b32 exec_lo, 0x%08x" % em)
    a.i("s_mov_b32 exec_hi, 0x%08x" % em)
    a.i("buffer_store_short v%d, v%d, s[%d:%d], s%d offen%s" % (vacc, vt + 2, SOUT, SOUT + 3, s_outoff, ("", " sc1", " sc0 sc1", " nt")[osc]))
    a.i("s_cmp_lg_u32 s%d, 0" % s_p)
    a.i("s_cbranch_scc1 L_noep")
    a.i("s_mov_b64 exec, 1")
    a.i("v_mov_b32 v%d, s%d" % (vt + 4, s_tag))
    a.i("buffer_store_dword v%d, v%d, s[%d:%d], s%d offen%s" % (vt + 4, v_zero, SWS, SWS + 3, s_epo, ("", " sc1", " sc0 sc1", " nt")[osc]))
    a.label("L_noep")
    if pad:
        a.i("s_add_u32 s98, s98, %d" % pad)
        a.label("L_pad")
        a.i("s_memrealtime s[100:101]")
        a.i("s_waitcnt lgkmcnt(0)")
        a.i("s_sub_u32 s100, s100, s98")
        a.i("s_cmp_lt_i32 s100, 0")
        a.i("s_cbranch_scc1 L_pad")
    if ts:
        a.label("L_ts")
        a.i("s_nop 7")
        stamp()
        a.i("s_waitcnt lgkmcnt(0)")
        a.i("s_mov_b64 exec, 1")
        a.i("s_lshl_b32 s%d, s2, 3" % s_off)
        a.i("s_add_u32 s%d, s%d, s%d" % (s_off, s_off, s_wave))
        a.i("s_lshl_b32 s%d, s%d, 6" % (s_off, s_off))
        a.i("s_add_u32 s%d, s%d, 0x%x" % (s_off, s_off, WS_TS))
        a.i("v_mov_b32 v%d, s98" % (v_T))
        a.i("v_mov_b32 v%d, s100" % (v_T + 1))
        assert nst[0] <= 13
        print("stamps:", nst[0] + 2)
        for k in range(nst[0]):
            a.i("v_mov_b32 v%d, s%d" % (v_T + 2 + k, s_ts + 2 * k))
        a.i("s_getreg_b32 s%d, hwreg(HW_REG_XCC_ID)" % s_tmp)
        a.i("s_lshl_b32 s%d, s%d, 16" % (s_tmp, s_tmp))
        a.i("s_add_u32 s%d, s%d, s%d" % (s_tmp, s_tmp, s_id))
        a.i("v_mov_b32 v%d, s%d" % (v_T + 15, s_tmp))
        if nst[0] <= 12: a.i("v_mov_b32 v%d, s43" % (v_T + 14))
        for k in range(4):
            a.i("buffer_store_dwordx4 %s, v%d, s[%d:%d], s%d offen offset:%d" % (vr(v_T + 4 * k), v_zero, SWS, SWS + 3, s_off, 16 * k))
    a.label("L_end1")
    a.i("s_endpgm")
    k1 = a.text() + kd(kname, 256, 102)
    head = HDR + "; @launch grid=(256,1,1) block=(512,1,1) lds=%d\n" % (49152 if nt else 32768)
    head += '.amdgcn_target "amdgcn-amd-amdhsa--gfx950"\n.text\n'
    return head + k1

if __name__ == "__main__":
    out = sys.argv[1]
    kw = {}
    for arg in sys.argv[2:]:
        k, v = arg.split("=")
        kw[k] = int(v, 0)
    open(out, "w").write(gen(**kw))
```

```python
import sys, copy
from asmlib import Asm
from gen1 import NAME, HDR, vr, kd, LOG2E, SCALE

WS_TS = 2 << 20
WS_EX = 1 << 19
WS_EP = (1 << 19) + (1 << 17)

def gen(D=6, ts=0, mapn=1, sleep=2, NSPIN=20000, pad=0, kvnt=1, wnt=1, D0=0, bq=0, bs=0,
        De=0, Xe=0, fine=0, ww=4, kfirst=0, CW=16, exp=0, exi=22, exu=29, prio=0, Ds=0, outw=1, pbar=1, qm=10, q0=0, om=10, o0=32, bk=6, od=0, smode=0, Df=5, f0=0, f1=200, tf=0, nt=1, pm=0, osc=0, exm=0, exo=0, pcap=3, pth=16, psl=6, nacc=1, nA=2, t16=1, perm=0, pf=0, pw=8, pfx=8, pfl=6, pf2=0, iw=-1, iwf=1, ym=0, plm=0, cpf=0, exs=0, ins=0, ycm=0, exq=0, exw=0, exl=0, rowm=0, gmap=0, tmap=0, xpos=44, xw=4, wmask=7, rpat=0, imask=255, yh=0, ysel=0, csel=0, cw=2, tk=20, chm=3):
    WNT = " nt" if wnt else ""
    KVNT = " nt" if kvnt else ""
    a = Asm()
    kname = NAME + "_kernel"
    a.raw(".globl %s\n.p2align 8\n.type %s,@function\n%s:" % (kname, kname, kname))
    SK, SV, SWQ, SWO, SX, SWS, SOUT = 44, 48, 52, 56, 60, 64, 68
    s_br, s_h, s_b, s_half, s_wave = 4, 5, 6, 7, 8
    s_kvbase, s_off, s_wqoff, s_wooff, s_tmp = 9, 10, 11, 12, 13
    s_grp, s_p = 14, 15
    s_m1, s_m0 = 76, 78
    s_log2e, s_scale = 80, 81
    s_rot = 3
    s_kvo = 82
    s_spin = 90
    s_inbox, s_id, s_outoff, s_ex, s_ybase, s_mx, s_tag = 91, 92, 93, 94, 95, 96, 97
    s_ep, s_tagb = 72, 73
    s_epo = 74
    s_t16 = 75 if t16 else s_tagb
    s_mh = 42
    s_ts = 16
    NC = 512 // CW
    IB = 64 * CW * 4
    lgCW = CW.bit_length() - 1
    nst = [0]
    def stamp():
        if not ts: return
        k = nst[0]; nst[0] += 1
        a.i("s_memrealtime s[%d:%d]" % (s_ts + 2 * k, s_ts + 2 * k + 1))
    a.i("s_cmp_ge_u32 s2, 256")
    a.i("s_cbranch_scc1 L_end1")
    a.i("s_load_dwordx16 s[16:31], s[0:1], 0")
    a.i("s_load_dwordx8 s[32:39], s[0:1], 64")
    a.i("s_load_dwordx2 s[40:41], s[0:1], 96")
    if ts or pad: a.i("s_memrealtime s[98:99]")
    if mapn == 1:
        a.i("s_bfe_u32 s%d, s2, 0x10002" % s_br)
        a.i("s_and_b32 s%d, s2, 3" % s_tmp)
        a.i("s_lshl_b32 s%d, s%d, 3" % (s_tmp, s_tmp))
        a.i("s_lshr_b32 s%d, s2, 5" % s_h)
        a.i("s_or_b32 s%d, s%d, s%d" % (s_h, s_h, s_tmp))
    else:
        a.i("s_lshr_b32 s%d, s2, 7" % s_br)
        a.i("s_bfe_u32 s%d, s2, 0x20005" % s_tmp)
        a.i("s_lshl_b32 s%d, s%d, 3" % (s_tmp, s_tmp))
        a.i("s_and_b32 s%d, s2, 7" % s_h)
        if perm:
            a.i("s_lshl_b32 s%d, s%d, 2" % (s_h, s_h))
            a.i("s_lshr_b32 s%d, 0x%x, s%d" % (s_h, perm, s_h))
            a.i("s_and_b32 s%d, s%d, 7" % (s_h, s_h))
        a.i("s_or_b32 s%d, s%d, s%d" % (s_h, s_h, s_tmp))
    a.i("s_bfe_u32 s%d, s2, 0x10004" % s_b)
    a.i("s_bfe_u32 s%d, s2, 0x10003" % s_half)
    v_lane, v_kv, v_wq, v_wo, v_x = 1, 2, 3, 4, 5
    v_g, v_c = 6, 7
    v_mask = 8
    v_A = [12, 16]
    v_D = 20
    v_q = 24
    v_s = [28, 29]
    v_t0 = 30
    v_T = 40
    v_ldsD, v_zero, v_y, v_ord, v_ldsY, v_tid4, v_exa, v_f = 56, 57, 58, 59, 60, 61, 62, 63
    v_e = 36
    v_ff = 38
    v_stw, v_str = 34, 35
    SLOT0 = 64
    NSLOT = (256 - SLOT0) // 4
    S = {"free": list(range(NSLOT)), "where": {}, "kvo": 1, "issued": 0, "D": D}
    slot = lambda k: SLOT0 + 4 * k
    a.i("v_and_b32 v%d, 63, v0" % v_lane)
    a.i("v_lshrrev_b32 v%d, 6, v0" % v_t0)
    a.i("v_readfirstlane_b32 s%d, v%d" % (s_wave, v_t0))
    a.i("v_lshrrev_b32 v%d, 4, v%d" % (v_g, v_lane))
    a.i("v_and_b32 v%d, 15, v%d" % (v_c, v_lane))
    a.i("s_lshl_b32 s%d, s%d, 26" % (s_kvbase, s_b))
    a.i("s_lshl_b32 s%d, s%d, 21" % (s_tmp, s_h))
    a.i("s_add_u32 s%d, s%d, s%d" % (s_kvbase, s_kvbase, s_tmp))
    a.i("s_lshl_b32 s%d, s%d, 18" % (s_tmp, s_half))
    a.i("s_add_u32 s%d, s%d, s%d" % (s_kvbase, s_kvbase, s_tmp))
    a.i("s_add_u32 s%d, s%d, 0x%x" % (s_kvbase, s_kvbase, 6144 * 256))
    a.i("s_lshl_b32 s%d, s%d, 10" % (s_off, s_b))
    a.i("s_lshl_b32 s%d, s%d, 8" % (s_wqoff, s_h))
    a.i("v_and_b32 v%d, 0x1c0, v0" % v_wq)
    a.i("v_add_u32 v%d, v%d, v%d" % (v_wq, v_wq, v_g))
    a.i("v_lshl_add_u32 v%d, v%d, 2, v%d" % (v_x, v_c, v_wq))
    a.i("v_lshlrev_b32 v%d, 1, v%d" % (v_x, v_x))
    a.i("v_lshlrev_b32 v%d, 13, v%d" % (v_wq, v_wq))
    a.i("v_lshl_add_u32 v%d, v%d, 4, v%d" % (v_wq, v_c, v_wq))
    v_kvt = [v_kv, 248, 249, 250]
    if rowm:
        S["free"].remove(NSLOT - 2)
        a.i("v_lshrrev_b32 v%d, 2, v%d" % (v_kv, v_t0))
        a.i("v_lshl_add_u32 v%d, v%d, 2, v%d" % (v_kv, v_kv, v_g))
        a.i("v_lshlrev_b32 v%d, 2, v%d" % (v_kv, v_kv))
        a.i("v_and_or_b32 v%d, v%d, 3, v%d" % (v_kv, v_t0, v_kv))
        a.i("v_lshlrev_b32 v%d, 13, v%d" % (v_kv, v_kv))
        if rowm == 1: a.i("v_lshl_add_u32 v%d, v%d, 4, v%d" % (v_kv, v_lane, v_kv))
        else: a.i("v_lshl_add_u32 v%d, v%d, 4, v%d" % (v_kv, v_c, v_kv))
        for t in range(1, 4): a.i("v_xor_b32 v%d, 0x%x, v%d" % (v_kvt[t], t << 8, v_kv))
    else:
        a.i("v_lshlrev_b32 v%d, 15, v%d" % (v_kv, v_t0))
        a.i("v_lshl_add_u32 v%d, v%d, 4, v%d" % (v_kv, v_lane, v_kv))
    RSTEP, RMASK = (1024, 0x1c00) if rowm else (4096, 0x7000)
    if imask != 255:
        a.i("s_and_b32 s%d, s2, %d" % (s_rot, imask))
        a.i("s_lshl_b32 s%d, s%d, 3" % (s_rot, s_rot))
    else:
        a.i("s_lshl_b32 s%d, s2, 3" % s_rot)
    if wmask == 7:
        a.i("s_add_u32 s%d, s%d, s%d" % (s_rot, s_rot, s_wave))
    elif wmask:
        a.i("s_and_b32 s%d, s%d, %d" % (s_tmp, s_wave, wmask))
        a.i("s_add_u32 s%d, s%d, s%d" % (s_rot, s_rot, s_tmp))
    a.i("s_add_u32 s%d, s%d, 1" % (s_rot, s_rot))
    a.i("s_mul_i32 s%d, s%d, 0x9e3779b1" % (s_rot, s_rot))
    a.i("s_lshr_b32 s%d, s%d, 15" % (s_tmp, s_rot))
    a.i("s_xor_b32 s%d, s%d, s%d" % (s_rot, s_rot, s_tmp))
    a.i("s_mul_i32 s%d, s%d, 0x85ebca6b" % (s_rot, s_rot))
    a.i("s_lshr_b32 s%d, s%d, 13" % (s_rot, s_rot))
    if rpat:
        a.i("s_lshl_b32 s%d, s%d, 2" % (s_tmp, s_wave))
        a.i("s_lshr_b32 s%d, 0x%x, s%d" % (s_tmp, rpat, s_tmp))
        a.i("s_lshl_b32 s%d, s%d, 12" % (s_tmp, s_tmp))
        a.i("s_add_u32 s%d, s%d, s%d" % (s_rot, s_rot, s_tmp))
    a.i("s_and_b32 s%d, s%d, 0x%x" % (s_kvo, s_rot, RMASK))
    a.i("s_add_u32 s%d, s%d, s%d" % (s_kvo, s_kvo, s_kvbase))
    for (r, sz) in ((SX, 2048), (SWQ, 0x400000), (SK, 0x8000000), (SV, 0x8000000), (SWO, 0x400000), (SWS, 0x800000), (SOUT, 4096)):
        a.i("s_mov_b32 s%d, 0x%x" % (r + 2, sz))
        a.i("s_mov_b32 s%d, 0x20000" % (r + 3))
    a.i("s_lshl_b32 s%d, s%d, 1" % (s_grp, s_br))
    a.i("s_or_b32 s%d, s%d, s%d" % (s_grp, s_grp, s_b))
    if csel == 2:
        a.i("s_mov_b32 s%d, 0x%x" % (s_epo, WS_EP))
    else:
        a.i("s_lshl_b32 s%d, s%d, 8" % (s_epo, s_grp))
        a.i("s_add_u32 s%d, s%d, 0x%x" % (s_epo, s_epo, WS_EP))
    a.i("s_cmp_eq_u32 s%d, 0" % s_br)
    a.i("s_waitcnt lgkmcnt(0)")
    if ts: a.i("s_memrealtime s[100:101]")
    def sel(r, A, B):
        a.i("s_cselect_b32 s%d, s%d, s%d" % (r, A, B))
        a.i("s_cselect_b32 s%d, s%d, s%d" % (r + 1, A + 1, B + 1))
    sel(SX, 16, 26)
    sel(SWQ, 22, 32)
    sel(SK, 18, 28)
    a.i("buffer_load_ushort v%d, v%d, s[%d:%d], s%d offen" % (v_x, v_x, SX, SX + 3, s_off), tag="x")
    sel(SV, 20, 30)
    sel(SWO, 24, 34)
    S["rsv"] = {}
    def pair():
        for k in S["free"]:
            if k + 1 in S["free"]: return k
        return None
    def can(key):
        if key[0] == "wo" and nt == 2:
            return pair() is not None if (key[1] // 4) % 2 == 0 else True
        return bool(S["free"])
    def load(key):
        kind, i = key
        if kind == "ex":
            a.i("buffer_load_dwordx2 v[%d:%d], v%d, s[%d:%d], s%d offen sc1%s" % (v_e, v_e + 1, v_exa, SWS, SWS + 3, s_ex, " nt" if exl else ""), tag=key)
            return
        if kind == "tk":
            a.i("s_mov_b64 exec, s[42:43]")
            a.i("buffer_atomic_add v%d, v%d, s[%d:%d], 0 offen sc0 sc1" % (v_x, v_zero, SX, SX + 3), tag=key)
            a.i("s_mov_b64 exec, -1")
            return
        if kind == "iw":
            a.i("buffer_load_dword v%d, v%d, s[%d:%d], s%d offen%s" % (v_x, 39, SWS, SWS + 3, s_inbox, (" ", " sc1", " sc0 sc1")[iwf].rstrip()), tag=key)
            return
        if kind == "pf":
            a.i("buffer_load_dword v%d, v%d, s[%d:%d], s%d offen%s" % (v_x, 39, SV, SV + 3, 42 + i, KVNT), tag=key)
            return
        if kind == "wo" and nt == 2:
            if (i // 4) % 2 == 0:
                k = pair(); S["free"].remove(k); S["free"].remove(k + 1); S["rsv"][i + 4] = k + 1
            else: k = S["rsv"].pop(i)
            S["where"][key] = k
        else:
            k = S["free"].pop(0); S["where"][key] = k
        if kind == "wq":
            if i > 0: a.i("s_add_u32 s%d, s%d, 32768" % (s_wqoff, s_wqoff))
            a.i("buffer_load_dwordx4 %s, v%d, s[%d:%d], s%d offen%s" % (vr(slot(k)), v_wq, SWQ, SWQ + 3, s_wqoff, WNT), tag=key)
        elif kind == "wo" and nt:
            if i > 0: a.i("s_add_u32 s%d, s%d, 8192" % (s_wooff, s_wooff))
            a.i("buffer_load_dwordx4 %s, v%d, s[%d:%d], s%d offen%s" % (vr(slot(k)), v_wo, SWO, SWO + 3, s_wooff, WNT), tag=key)
        elif kind == "wo":
            if i > 0 and i % 4 == 0: a.i("s_add_u32 s%d, s%d, 4096" % (s_wooff, s_wooff))
            a.i("buffer_load_dwordx4 %s, v%d, s[%d:%d], s%d offen offset:%d%s" % (vr(slot(k)), v_wo, SWO, SWO + 3, s_wooff, (i % 4) * 256, WNT), tag=key)
        elif kind == "x":
            a.i("buffer_load_dwordx4 %s, v%d, s[%d:%d], s42 offen offset:%d%s" % (vr(slot(k)), v_kv, SK, SK + 3, (i % 4) * 1024, KVNT), tag=key)
        elif kind == "v" and i >= 28 and (gmap or tmap):
            if i == 28:
                a.i("s_cmp_lg_u32 s43, 0")
                a.i("s_cselect_b32 s43, 0x8000000, s%d" % (s_kvo + 7))
            a.i("buffer_load_dwordx4 %s, v%d, s[%d:%d], s43 offen offset:%d%s" % (vr(slot(k)), v_kv, SV, SV + 3, (i % 4) * 1024, KVNT), tag=key)
        else:
            j = i // 4
            if j >= S["kvo"]:
                a.i("s_add_u32 s%d, s%d, %d" % (s_rot, s_rot, RSTEP))
                a.i("s_and_b32 s%d, s%d, 0x%x" % (s_kvo + j, s_rot, RMASK))
                a.i("s_add_u32 s%d, s%d, s%d" % (s_kvo + j, s_kvo + j, s_kvbase))
                S["kvo"] = j + 1
            r = SK if kind == "k" else SV
            if rowm: a.i("buffer_load_dwordx4 %s, v%d, s[%d:%d], s%d offen%s" % (vr(slot(k)), v_kvt[i % 4], r, r + 3, s_kvo + j, KVNT), tag=key)
            else: a.i("buffer_load_dwordx4 %s, v%d, s[%d:%d], s%d offen offset:%d%s" % (vr(slot(k)), v_kv, r, r + 3, s_kvo + j, (i % 4) * 1024, KVNT), tag=key)
    KV = [("k", i) for i in range(32)] + [("v", i) for i in range(32)]
    before = {}
    for i in range(16):
        before.setdefault(q0 + i * qm // 10, []).append(("wq", i))
        before.setdefault(64 if i >= 16 - od else o0 + i * om // 10, []).append(("wo", i))
    before.setdefault(32 + exi, []).append(("ex", 0))
    if iw >= 0: before.setdefault(iw, []).append(("iw", 0))
    if csel == 2: before.setdefault(32 + tk, []).append(("tk", 0))
    if gmap or tmap:
        for i in range(4): before.setdefault(xpos + i, []).append(("x", i))
    assert max(before) <= 64
    L = []
    for n, k in enumerate(KV):
        L += before.get(n, []); L.append(k)
    L += before.get(64, [])
    L += [("pf", i) for i in range(pf)]
    idx = {k: n for n, k in enumerate(L)}
    def issue_upto(n):
        while S["issued"] <= min(n, len(L) - 1) and can(L[S["issued"]]):
            load(L[S["issued"]]); S["issued"] += 1
    S["pos"] = 0
    def adv():
        key = L[S["pos"]]
        assert S["pos"] < S["issued"], key
        a.wait_vm(key)
        S["pos"] += 1
        if key[0] == "x": S["free"].append(S["where"].pop(key))
    def refill():
        issue_upto(reach(S["pos"] - 1, win(S["pos"] - 1)))
    def need(key):
        while S["pos"] <= idx[key]:
            adv()
            if S["pos"] <= idx[key]: refill()
    cum = [0]
    for k in L: cum.append(cum[-1] + (ww if k[0] in ("wq", "wo") else 0 if k[0] in ("ex", "iw", "tk") else pw if k[0] == "pf" else xw if k[0] == "x" else 4))
    def reach(n, d):
        m = n
        while m + 1 < len(L) and cum[m + 2] - cum[n + 1] <= 4 * d: m += 1
        return m
    def win(n):
        if De and n >= len(L) - Xe: return De
        if S.get("fast") and f0 <= n < f1: return Df
        return S["D"]
    def done(key):
        S["free"].append(S["where"].pop(key))
        refill()
    issue_upto(1)
    a.i("s_load_dword s%d, s[40:41], s%d" % (s_ep, s_epo))
    for (r, A) in ((SWS, 40), (SOUT, 36)):
        a.i("s_mov_b32 s%d, s%d" % (r, A)); a.i("s_mov_b32 s%d, s%d" % (r + 1, A + 1))
    if csel == 2:
        a.i("s_mov_b32 s%d, s38" % SX); a.i("s_mov_b32 s%d, s39" % (SX + 1)); a.i("s_mov_b32 s%d, 256" % (SX + 2))
        a.i("s_cmp_eq_u32 s%d, 0" % s_wave)
        a.i("s_cselect_b32 s42, 1, 0")
        a.i("s_mov_b32 s43, 0")
    issue_upto(reach(-1, D0 or D))
    if fine: stamp()
    if cpf:
        a.i("s_getpc_b64 s[42:43]")
        a.i("v_lshlrev_b32 v39, 6, v0")
        a.i("v_min_u32 v39, 0x%x, v39" % (cpf * 1024))
        a.i("global_load_dword v55, v39, s[42:43]", tag="cpf")
    if gmap or tmap:
        a.i("s_and_b32 s%d, s2, 7" % s_tmp)
        a.i("s_lshl_b32 s%d, s%d, 2" % (s_tmp, s_tmp))
        a.i("s_lshr_b32 s42, 0x%x, s%d" % (tmap, s_tmp))
        a.i("s_and_b32 s42, s42, 15")
        a.i("s_lshr_b32 s43, 0x%x, s%d" % (gmap, s_tmp))
        a.i("s_and_b32 s43, s43, 15")
        a.i("s_sub_u32 s%d, s%d, 0x100000" % (s_tmp, s_kvo))
        a.i("s_cmp_lt_u32 s%d, s42" % s_wave)
        a.i("s_cselect_b32 s42, s%d, 0x8000000" % s_tmp)
        a.i("s_xor_b32 s%d, s%d, 7" % (s_tmp, s_wave))
        a.i("s_cmp_lt_u32 s%d, s43" % s_tmp)
        a.i("s_cselect_b32 s43, 1, 0")
    if iw >= 0:
        a.i("v_lshrrev_b32 v39, 3, v0")
        a.i("v_lshlrev_b32 v39, 6, v39")
    if pf:
        for j in range(pf):
            px = pf2 if (pf2 and j == 1) else pfx
            if j == 0 or pf2:
                a.i("s_xor_b32 s43, s2, %d" % px)
                a.i("s_lshl_b32 s43, s43, 3")
                a.i("s_add_u32 s43, s43, s%d" % s_wave)
                a.i("s_add_u32 s43, s43, 1")
                a.i("s_mul_i32 s43, s43, 0x9e3779b1")
                a.i("s_lshr_b32 s%d, s43, 15" % s_tmp)
                a.i("s_xor_b32 s43, s43, s%d" % s_tmp)
                a.i("s_mul_i32 s43, s43, 0x85ebca6b")
                a.i("s_lshr_b32 s43, s43, 13")
                a.i("s_add_u32 s43, s43, 0x%x" % (0x7000 if pfl == 6 else 0x6000))
                a.i("s_xor_b32 s%d, s%d, 0x%x" % (s_tmp, s_kvbase, ((px >> 3) & 1) << 18 | ((px >> 4) & 1) << 26))
            else:
                a.i("s_sub_u32 s43, s43, 0x1000")
            if j == 0:
                a.i("s_and_b32 s42, s43, 0x7000")
                a.i("s_add_u32 s42, s42, s%d" % s_tmp)
            else:
                a.i("s_and_b32 s43, s43, 0x7000")
                a.i("s_add_u32 s43, s43, s%d" % s_tmp)
        a.i("v_lshlrev_b32 v39, 15, v%d" % v_t0)
        a.i("v_lshl_add_u32 v39, v%d, %d, v39" % (v_lane, pfl))
    a.i("s_lshl_b32 s%d, s%d, 1" % (s_p, s_h))
    a.i("s_or_b32 s%d, s%d, s%d" % (s_p, s_p, s_half))
    a.i("s_lshl_b32 s%d, s%d, 6" % (s_id, s_grp))
    a.i("s_add_u32 s%d, s%d, s%d" % (s_id, s_id, s_p))
    if ins:
        assert CW == 16
        a.i("s_lshl_b32 s%d, s%d, 13" % (s_ybase, s_grp))
        a.i("s_add_u32 s%d, s%d, 0x400000" % (s_ybase, s_ybase))
        a.i("s_and_b32 s%d, s%d, 15" % (s_inbox, s_h))
        a.i("s_lshl_b32 s%d, s%d, 17" % (s_inbox, s_inbox))
        a.i("s_lshr_b32 s%d, s%d, 4" % (s_tmp, s_h))
        a.i("s_lshl_b32 s%d, s%d, 12" % (s_tmp, s_tmp))
        a.i("s_add_u32 s%d, s%d, s%d" % (s_inbox, s_inbox, s_tmp))
    else:
        a.i("s_lshl_b32 s%d, s%d, 17" % (s_ybase, s_grp))
        a.i("s_lshl_b32 s%d, s%d, 11" % (s_inbox, s_p))
    a.i("s_add_u32 s%d, s%d, s%d" % (s_inbox, s_inbox, s_ybase))
    a.i("s_lshl_b32 s%d, s%d, %d" % (s_tmp, s_p, lgCW + 2))
    a.i("s_add_u32 s%d, s%d, s%d" % (s_ybase, s_ybase, s_tmp))
    a.i("v_lshlrev_b32 v%d, 2, v0" % v_tid4)
    if nt:
        a.i("v_and_b32 v%d, 0x1c3, v0" % (v_t0 + 2))
        a.i("v_bfe_u32 v%d, v0, 2, 2" % (v_t0 + 1))
        a.i("v_lshl_add_u32 v%d, v%d, 4, v%d" % (v_t0 + 2, v_t0 + 1, v_t0 + 2))
        a.i("v_bfe_u32 v%d, v0, 5, 1" % (v_t0 + 1))
        a.i("v_lshl_add_u32 v%d, v%d, 2, v%d" % (v_t0 + 2, v_t0 + 1, v_t0 + 2))
        a.i("v_bfe_u32 v%d, v0, 4, 1" % (v_t0 + 1))
        a.i("v_lshl_add_u32 v%d, v%d, 3, v%d" % (v_t0 + 2, v_t0 + 1, v_t0 + 2))
        if ycm: a.i("v_mov_b32 v%d, v0" % (v_t0 + 2))
        if ins:
            a.i("v_bfe_u32 v%d, v%d, 4, 4" % (v_y, v_t0 + 2))
            a.i("v_lshlrev_b32 v%d, 17, v%d" % (v_y, v_y))
            a.i("v_bfe_u32 v%d, v%d, 8, 1" % (v_t0 + 1, v_t0 + 2))
            a.i("v_lshl_add_u32 v%d, v%d, 12, v%d" % (v_y, v_t0 + 1, v_y))
        else:
            a.i("v_lshrrev_b32 v%d, %d, v%d" % (v_y, lgCW, v_t0 + 2))
            a.i("v_lshlrev_b32 v%d, %d, v%d" % (v_y, lgCW + 8, v_y))
        a.i("v_and_b32 v%d, %d, v%d" % (v_t0 + 1, CW - 1, v_t0 + 2))
        a.i("v_lshl_add_u32 v%d, v%d, 2, v%d" % (v_y, v_t0 + 1, v_y))
    else:
        a.i("v_lshrrev_b32 v%d, %d, v0" % (v_y, lgCW))
        a.i("v_lshlrev_b32 v%d, %d, v%d" % (v_y, lgCW + 8, v_y))
        a.i("v_and_b32 v%d, %d, v%d" % (v_t0 + 1, CW * 4 - 1, v_tid4))
        a.i("v_add_u32 v%d, v%d, v%d" % (v_y, v_y, v_t0 + 1))
    if exs:
        a.i("s_bfe_u32 s%d, s%d, 0x40001" % (s_ex, s_id))
        a.i("s_lshl_b32 s%d, s%d, 17" % (s_ex, s_ex))
        a.i("s_lshr_b32 s%d, s%d, 5" % (s_tmp, s_id))
        a.i("s_lshl_b32 s%d, s%d, 12" % (s_tmp, s_tmp))
        a.i("s_add_u32 s%d, s%d, s%d" % (s_ex, s_ex, s_tmp))
        a.i("s_add_u32 s%d, s%d, 0x%x" % (s_ex, s_ex, 0x408000 + exo))
    else:
        a.i("s_lshr_b32 s%d, s%d, 1" % (s_ex, s_id))
        a.i("s_lshl_b32 s%d, s%d, 10" % (s_ex, s_ex))
        a.i("s_add_u32 s%d, s%d, 0x%x" % (s_ex, s_ex, WS_EX + exo))
    lge = 7 if exm == 3 else 6
    assert exm != 3 or exs
    a.i("v_lshlrev_b32 v%d, %d, v%d" % (v_exa, lge, v_c))
    a.i("s_lshl_b32 s%d, s%d, 3" % (s_tmp, s_half))
    a.i("s_add_u32 s%d, s%d, s%d" % (s_tmp, s_tmp, s_wave))
    a.i("s_lshl_b32 s%d, s%d, %d" % (s_tmp, s_tmp, lge))
    a.i("v_mov_b32 v%d, s%d" % (v_f, s_tmp))
    if exm in (1, 3):
        a.i("v_and_b32 v%d, %d, v0" % (v_t0 + 1, 3 if exm == 1 else 7))
        a.i("v_lshl_add_u32 v%d, v%d, 4, v%d" % (v_f, v_t0 + 1, v_f))
    if exw:
        a.i("buffer_load_dword v55, v%d, s[%d:%d], s%d offen%s" % (v_f, SWS, SWS + 3, s_ex, ("", "", " sc1", " sc0 sc1", " nt")[exw]), tag="exw")
    a.i("v_mov_b32 v%d, 0" % v_zero)
    a.i("v_mov_b32 v%d, 0xffffff00" % v_ff)
    a.i("s_lshl_b32 s%d, s%d, 17" % (s_wooff, s_h))
    if nt:
        a.i("v_lshrrev_b32 v%d, 3, v%d" % (v_wo, v_lane))
        a.i("v_lshlrev_b32 v%d, 10, v%d" % (v_wo, v_wo))
        a.i("v_lshl_add_u32 v%d, v%d, 7, v%d" % (v_wo, v_t0, v_wo))
        a.i("v_and_b32 v%d, 7, v0" % (v_t0 + 1))
        a.i("v_lshl_add_u32 v%d, v%d, 4, v%d" % (v_wo, v_t0 + 1, v_wo))
        a.i("v_lshlrev_b32 v%d, 12, v%d" % (v_stw, v_t0))
        a.i("v_lshl_add_u32 v%d, v%d, 10, v%d" % (v_str, v_g, v_stw))
        a.i("v_lshl_add_u32 v%d, v%d, 5, v%d" % (v_str, v_c, v_str))
        a.i("v_lshl_add_u32 v%d, v%d, 4, v%d" % (v_stw, v_lane, v_stw))
    if nt == 2:
        a.i("v_mul_u32_u24 v%d, 288, v%d" % (v_ldsY, v_t0))
        a.i("v_lshl_add_u32 v%d, v%d, 3, v%d" % (v_ldsY, v_c, v_ldsY))
        a.i("v_and_b32 v%d, 1, v%d" % (v_t0 + 1, v_g))
        a.i("v_lshl_add_u32 v%d, v%d, 2, v%d" % (v_ldsY, v_t0 + 1, v_ldsY))
        a.i("v_add_u32 v%d, 0x2000, v%d" % (v_ldsY, v_ldsY))
        a.i("v_mul_u32_u24 v%d, 144, v%d" % (v_ord, v_c))
        a.i("v_lshl_add_u32 v%d, v%d, 4, v%d" % (v_ord, v_g, v_ord))
        a.i("v_and_b32 v39, 1, v0")
        a.i("v_mul_u32_u24 v39, 0xaaaa, v39")
        a.i("v_add_u32 v39, 0x4444, v39")
    elif nt:
        a.i("v_mul_u32_u24 v%d, 288, v%d" % (v_ldsY, v_t0))
        a.i("v_lshl_add_u32 v%d, v%d, 4, v%d" % (v_ldsY, v_c, v_ldsY))
        a.i("v_and_b32 v%d, 1, v%d" % (v_t0 + 1, v_g))
        a.i("v_lshl_add_u32 v%d, v%d, 3, v%d" % (v_ldsY, v_t0 + 1, v_ldsY))
        a.i("v_lshrrev_b32 v%d, 2, v%d" % (v_t0 + 1, v_c))
        a.i("v_and_b32 v%d, 1, v0" % v_ord)
        a.i("v_lshl_add_u32 v%d, v%d, 1, v%d" % (v_ord, v_t0 + 1, v_ord))
        a.i("v_mul_u32_u24 v%d, 288, v%d" % (v_ord, v_ord))
        a.i("v_lshl_add_u32 v%d, v%d, 4, v%d" % (v_ord, v_g, v_ord))
    else:
        a.i("v_lshl_add_u32 v%d, v%d, 4, v%d" % (v_ord, v_t0, v_g))
        a.i("v_lshlrev_b32 v%d, 10, v%d" % (v_wo, v_ord))
        a.i("v_lshl_add_u32 v%d, v%d, 4, v%d" % (v_wo, v_c, v_wo))
        a.i("v_and_b32 v%d, 3, v%d" % (v_t0 + 1, v_c))
        a.i("v_lshl_add_u32 v%d, v%d, 2, v%d" % (v_ord, v_t0 + 1, v_ord))
        a.i("v_lshlrev_b32 v%d, 2, v%d" % (v_ord, v_ord))
        a.i("v_add_u32 v%d, 0x2000, v%d" % (v_ord, v_ord))
    for (r, val) in ((s_m1, 0xcccccccc), (s_m0, 0xaaaaaaaa)):
        a.i("s_mov_b32 s%d, 0x%x" % (r, val)); a.i("s_mov_b32 s%d, 0x%x" % (r + 1, val))
    a.i("s_mov_b32 s%d, 0x%x" % (s_log2e, LOG2E))
    a.i("s_mov_b32 s%d, 0x%x" % (s_scale, SCALE))
    a.i("v_mov_b32 v%d, 0xffff" % (v_t0 + 2))
    a.i("v_mov_b32 v%d, 0xffff0000" % (v_t0 + 3))
    a.i("v_cndmask_b32 v%d, v%d, v%d, s[%d:%d]" % (v_t0 + 2, v_t0 + 2, v_t0 + 3, s_m0, s_m0 + 1))
    a.i("v_bfe_u32 v%d, v0, 1, 2" % (v_t0 + 3))
    for t in range(4):
        a.i("v_cmp_eq_u32 vcc, %d, v%d" % (t, v_t0 + 3))
        a.i("v_cndmask_b32 v%d, 0, v%d, vcc" % (v_mask + t, v_t0 + 2))
    a.i("v_and_b32 v%d, 1, v%d" % (v_t0 + 3, v_g))
    a.i("v_lshlrev_b32 v%d, 4, v%d" % (v_t0 + 3, v_t0 + 3))
    a.i("v_lshl_add_u32 v%d, v%d, 5, v%d" % (v_t0 + 3, v_c, v_t0 + 3))
    a.i("v_lshl_add_u32 v%d, v%d, 9, v%d" % (v_ldsD, v_t0, v_t0 + 3))
    if not nt: a.i("v_lshl_add_u32 v%d, v%d, 11, v%d" % (v_ldsY, v_t0, v_t0 + 3))
    a.i("s_lshl_b32 s%d, s%d, 11" % (s_outoff, s_b))
    a.i("s_lshl_b32 s%d, s%d, 10" % (s_tmp, s_br))
    a.i("s_add_u32 s%d, s%d, s%d" % (s_outoff, s_outoff, s_tmp))
    if ycm:
        a.i("s_lshr_b32 s%d, s%d, 2" % (s_tmp, s_h))
        a.i("s_lshl_b32 s%d, s%d, 7" % (s_tmp, s_tmp))
        a.i("s_add_u32 s%d, s%d, s%d" % (s_outoff, s_outoff, s_tmp))
        a.i("s_bfe_u32 s%d, s%d, 0x10001" % (s_tmp, s_h))
        a.i("s_lshl_b32 s%d, s%d, 3" % (s_tmp, s_tmp))
        a.i("s_add_u32 s%d, s%d, s%d" % (s_outoff, s_outoff, s_tmp))
        a.i("s_and_b32 s%d, s%d, 1" % (s_tmp, s_h))
        a.i("s_lshl_b32 s%d, s%d, 4" % (s_tmp, s_tmp))
    else:
        a.i("s_lshl_b32 s%d, s%d, 4" % (s_tmp, s_p))
    a.i("s_add_u32 s%d, s%d, s%d" % (s_outoff, s_outoff, s_tmp))
    if prio:
        a.i("s_cmp_lt_u32 s%d, 4" % s_wave)
        a.i("s_cbranch_scc1 L_noprio")
        a.i("s_setprio 1")
        a.label("L_noprio")
    def buildA(vec, i, A):
        for t in range(4):
            a.i("v_and_b32_dpp v%d, v%d, v%d row_newbcast:%d row_mask:0xf bank_mask:0xf" % (A + t, vec, v_mask + t, i))
    def gemv_block(vec, keys, first, hook=None):
        buildA(vec, 0, v_A[0])
        for i, key in enumerate(keys):
            if i + 1 < len(keys): buildA(vec, i + 1, v_A[(i + 1) % 2])
            need(key)
            c = "0" if (first and i == 0) else vr(v_D)
            a.i("v_mfma_f32_16x16x32_bf16 %s, %s, %s, %s" % (vr(v_D), vr(v_A[i % 2]), vr(slot(S["where"][key])), c))
            done(key)
            if hook: hook(key)
            if fine and key in (("wq", 0), ("wq", 7), ("v", 0), ("v", 15)): stamp()
    a.wait_vm("x")
    if fine: stamp()
    a.i("v_lshl_or_b32 v%d, v%d, 16, v%d" % (v_x, v_x, v_x))
    gemv_block(v_x, [("wq", i) for i in range(16)], True)
    stamp()
    issue_upto(reach(S["pos"] - 1, D + bq))
    a.i("ds_write_b128 v%d, %s" % (v_ldsD, vr(v_D)))
    a.i("v_lshlrev_b32 v%d, 3, v%d" % (v_t0, v_lane))
    a.i("v_and_b32 v%d, 0x700, v%d" % (v_t0 + 3, v_tid4))
    a.i("v_lshl_add_u32 v%d, v%d, 4, v%d" % (v_t0 + 3, v_c, v_t0 + 3))
    a.i("s_waitcnt lgkmcnt(0)")
    a.i("s_barrier")
    for w in range(8):
        a.i("ds_read_b64 v[%d:%d], v%d offset:%d" % (v_T + 2 * w, v_T + 2 * w + 1, v_t0, w * 512))
    a.i("s_add_u32 s%d, s%d, 1" % (s_tag, s_ep))
    a.i("s_and_b32 s%d, s%d, 0xff" % (s_tagb, s_tag))
    if t16: a.i("s_and_b32 s%d, s%d, 0xffff" % (s_t16, s_tag))
    a.i("s_waitcnt lgkmcnt(0)")
    for step in (1, 2, 4):
        for w in range(0, 8, 2 * step):
            a.i("v_add_f32 v%d, v%d, v%d" % (v_T + 2 * w, v_T + 2 * w, v_T + 2 * (w + step)))
            a.i("v_add_f32 v%d, v%d, v%d" % (v_T + 2 * w + 1, v_T + 2 * w + 1, v_T + 2 * (w + step) + 1))
    a.i("v_cvt_pk_bf16_f32 v%d, v%d, v%d" % (v_T, v_T, v_T + 1))
    a.i("ds_write_b32 v%d, v%d offset:4096" % (v_tid4, v_T))
    a.i("s_waitcnt lgkmcnt(0)")
    a.i("ds_read_b128 %s, v%d offset:4096" % (vr(v_q), v_t0 + 3))
    a.i("s_waitcnt lgkmcnt(0)")
    stamp()

    if csel == 2: a.i("v_mov_b32 v%d, 1" % v_x)
    def stream_part(sfx):
        for blk in range(2):
            for i in range(16):
                a.i("v_mov_b32 v%d, 0" % (v_T + i))
            for i in range(16):
                key = ("k", blk * 16 + i)
                need(key)
                for t in range(4):
                    a.i("v_dot2c_f32_bf16 v%d, v%d, v%d" % (v_T + i, slot(S["where"][key]) + t, v_q + t))
                done(key)
                if idx[key] < S["pos"] - 1:
                    S["bk"] = S.get("bk", 0) + 1
                    if S["bk"] % bk == 0 and S["pos"] < S["issued"]:
                        adv(); refill()
            T = v_T
            for k in range(8):
                a.i("v_add_f32_dpp v%d, v%d, v%d row_ror:8 row_mask:0xf bank_mask:0x3" % (T + k, T + k, T + k))
            for k in range(8):
                a.i("v_add_f32_dpp v%d, v%d, v%d row_ror:8 row_mask:0xf bank_mask:0xc" % (T + k, T + k + 8, T + k + 8))
            for k in range(4):
                a.i("v_add_f32_dpp v%d, v%d, v%d row_half_mirror row_mask:0xf bank_mask:0x5" % (T + k, T + k, T + k))
            for k in range(4):
                a.i("v_add_f32_dpp v%d, v%d, v%d row_half_mirror row_mask:0xf bank_mask:0xa" % (T + k, T + k + 4, T + k + 4))
            for k in range(4):
                a.i("v_add_f32_dpp v%d, v%d, v%d quad_perm:[2,3,0,1] row_mask:0xf bank_mask:0xf" % (T + k, T + k, T + k))
            for k in range(2):
                a.i("v_cndmask_b32 v%d, v%d, v%d, s[%d:%d]" % (T + k, T + k, T + k + 2, s_m1, s_m1 + 1))
            for k in range(2):
                a.i("v_add_f32_dpp v%d, v%d, v%d quad_perm:[1,0,3,2] row_mask:0xf bank_mask:0xf" % (T + k, T + k, T + k))
            s = v_s[blk]
            a.i("v_cndmask_b32 v%d, v%d, v%d, s[%d:%d]" % (s, T, T + 1, s_m0, s_m0 + 1))
            a.i("v_cvt_pk_bf16_f32 v%d, v%d, v%d" % (s, s, s))
            a.i("v_and_b32 v%d, 0xffff0000, v%d" % (s, s))
            a.i("v_mul_f32 v%d, s%d, v%d" % (s, s_scale, s))
            a.i("v_cvt_pk_bf16_f32 v%d, v%d, v%d" % (s, s, s))
            a.i("v_and_b32 v%d, 0xffff0000, v%d" % (s, s))
        stamp()
        issue_upto(reach(S["pos"] - 1, S["D"] + bs))
        def wave_red(op, r):
            out = []
            for rot in (8, 4, 2, 1):
                out.append("%s_dpp v%d, v%d, v%d row_ror:%d row_mask:0xf bank_mask:0xf" % (op, r, r, r, rot))
            out.append("%s_dpp v%d, v%d, v%d row_bcast:15 row_mask:0xa bank_mask:0xf" % (op, r, r, r))
            out.append("%s_dpp v%d, v%d, v%d row_bcast:31 row_mask:0xc bank_mask:0xf" % (op, r, r, r))
            return out
        m, l = v_t0, v_t0 + 1
        a.i("v_max_f32 v%d, v%d, v%d" % (m, v_s[0], v_s[1]))
        for x in wave_red("v_max_f32", m): a.i(x)
        a.i("v_readlane_b32 s%d, v%d, 63" % (s_mx, m))
        for s in v_s: a.i("v_subrev_f32 v%d, s%d, v%d" % (s, s_mx, s))
        for s in v_s: a.i("v_mul_f32 v%d, s%d, v%d" % (s, s_log2e, s))
        for s in v_s: a.i("v_exp_f32 v%d, v%d" % (s, s))
        a.i("v_add_f32 v%d, v%d, v%d" % (l, v_s[0], v_s[1]))
        for s in v_s: a.i("v_cvt_pk_bf16_f32 v%d, v%d, v%d" % (s, s, s))
        stamp()
        fill = wave_red("v_add_f32", l)
        fill.append("v_or_b32 v%d, s%d, v%d" % (m, s_t16, m))
        fill.append("v_and_or_b32 v%d, v%d, v%d, s%d" % (l, l, v_ff, s_tagb))
        e0, e1, t1, t2 = v_e, v_e + 1, v_t0 + 2, v_t0 + 3
        S["won"] = 0
        def wo_tr():
            while nt and S["won"] < 16 and idx[("wo", S["won"])] < S["pos"]:
                n = S["won"]; S["won"] += 1
                a.i("ds_write_b128 v%d, %s offset:%d" % (v_stw, vr(slot(S["where"][("wo", n)])), 16384 + (n % 4) * 1024))
                if n % 4 == 3:
                    for nb in range(4):
                        r = slot(S["where"][("wo", n - 3 + nb)])
                        for hf in range(2):
                            a.i("ds_read_b64_tr_b16 v[%d:%d], v%d offset:%d" % (r + 2 * hf, r + 2 * hf + 1, v_str, 16384 + hf * 512 + nb * 8))
        def hook(key):
            wo_tr()
            if csel == 2 and not S.get("tkd") and idx[("tk", 0)] < S["pos"]:
                S["tkd"] = 1
                a.i("s_mov_b64 exec, s[42:43]")
                a.i("ds_write_b32 v%d, v%d offset:12288" % (v_zero, v_x))
                a.i("s_mov_b64 exec, -1")
            if fill:
                a.i(fill.pop(0))
                if not fill:
                    a.i("s_mov_b32 exec_lo, 0")
                    if exm == 0:
                        a.i("s_mov_b32 exec_hi, 0x80000000")
                        a.i("buffer_store_dwordx2 v[%d:%d], v%d, s[%d:%d], s%d offen sc1" % (m, l, v_f, SWS, SWS + 3, s_ex), tag="exst")
                    elif exm in (1, 3):
                        a.i("s_mov_b32 exec_hi, 0x%x" % (0xf0000000 if exm == 1 else 0xff000000))
                        a.i("buffer_store_dwordx4 v[%d:%d], v%d, s[%d:%d], s%d offen %s" % (m, m + 3, v_f, SWS, SWS + 3, s_ex, ("sc1", "sc0 sc1", "sc1 nt", "sc0 sc1 nt", "", "nt", "sc0", "")[exq]), tag="exst")
                        if exq == 7: a.i("buffer_wbl2 sc1", tag="wbl2")
                    a.i("s_mov_b64 exec, -1")
            if nt == 2 and key == ("v", 28):
                assert S["issued"] >= idx[("v", 31)] + 1
                S["acc"] = [slot(S["free"].pop(0)) for _ in range(4)]
                for r in S["acc"]:
                    for e in (0, 2): a.i("v_mov_b64 v[%d:%d], 0" % (r + e, r + e + 1))
            if key == ("v", exu):
                assert ("ex", 0) not in a.vm and idx[("ex", 0)] < S["issued"]
                a.i("s_mov_b32 s%d, %d" % (s_spin, NSPIN if exm != 2 else 0))
                a.label("L_ex" + sfx)
                if t16:
                    a.i("v_bitop3_b32 v%d, v%d, s%d, v%d bitop3:0x14" % (t1, e1, s_t16, v_ff))
                    a.i("v_bitop3_b32 v%d, v%d, s%d, v%d bitop3:0xf6" % (t1, t1, s_t16, e0))
                    a.i("v_and_b32 v%d, 0xffff, v%d" % (t1, t1))
                else:
                    a.i("v_xor_b32 v%d, s%d, v%d" % (t1, s_tagb, e0))
                    a.i("v_bitop3_b32 v%d, v%d, s%d, v%d bitop3:0xf6" % (t1, t1, s_tagb, e1))
                    a.i("v_and_b32 v%d, 0xff, v%d" % (t1, t1))
                a.i("v_cmp_ne_u32 vcc, 0, v%d" % t1)
                a.i("s_cbranch_vccz L_ex_ok" + sfx)
                a.i("s_sub_u32 s%d, s%d, 1" % (s_spin, s_spin))
                a.i("s_cbranch_scc1 L_ex_ok" + sfx)
                a.i("s_sleep 4")
                a.i("buffer_load_dwordx2 v[%d:%d], v%d, s[%d:%d], s%d offen sc1%s" % (v_e, v_e + 1, v_exa, SWS, SWS + 3, s_ex, " nt" if exl else ""))
                a.vm.pop()
                a.i("s_waitcnt vmcnt(0)")
                a.i("s_branch L_ex" + sfx)
                a.label("L_ex_ok" + sfx)
                if ts and not (pf or gmap or tmap or csel == 2): a.i("s_sub_u32 s43, %d, s%d" % (NSPIN, s_spin))
                a.i("v_and_b32 v%d, 0xffff0000, v%d" % (e0, e0))
                a.i("v_max_f32_dpp v%d, v%d, v%d row_ror:8 row_mask:0xf bank_mask:0xf" % (t1, e0, e0))
                for rot in (4, 2, 1):
                    a.i("v_max_f32_dpp v%d, v%d, v%d row_ror:%d row_mask:0xf bank_mask:0xf" % (t1, t1, t1, rot))
                a.i("v_sub_f32 v%d, v%d, v%d" % (e0, e0, t1))
                a.i("v_sub_f32 v%d, s%d, v%d" % (t2, s_mx, t1))
                a.i("v_mul_f32 v%d, s%d, v%d" % (e0, s_log2e, e0))
                a.i("v_mul_f32 v%d, s%d, v%d" % (t2, s_log2e, t2))
                a.i("v_exp_f32 v%d, v%d" % (e0, e0))
                a.i("v_exp_f32 v%d, v%d" % (t2, t2))
                a.i("v_mul_f32 v%d, v%d, v%d" % (e0, e0, e1))
                for rot in (8, 4, 2, 1):
                    a.i("v_add_f32_dpp v%d, v%d, v%d row_ror:%d row_mask:0xf bank_mask:0xf" % (e0, e0, e0, rot))
                a.i("v_rcp_f32 v%d, v%d" % (e0, e0))
                a.i("v_mul_f32 v%d, v%d, v%d" % (v_f, t2, e0))
        gemv_block(v_s[0], [("v", i) for i in range(16)], True, hook)
        assert not fill
        gemv_block(v_s[1], [("v", i) for i in range(16, 32)], False, hook)
        stamp()
        issue_upto(len(L) - 1)
        if nt == 2:
            assert S["won"] == 16
            for t in range(4): a.i("v_mul_f32 v%d, v%d, v%d" % (v_D + t, v_f, v_D + t))
            for e in range(2): a.i("v_cvt_pk_bf16_f32 v%d, v%d, v%d" % (v_D + e, v_D + 2 * e, v_D + 2 * e + 1))
            a.i("ds_write2_b32 v%d, v%d, v%d offset0:0 offset1:36" % (v_ldsY, v_D, v_D + 1))
            a.i("s_waitcnt lgkmcnt(0)")
            a.i("s_barrier")
            for kk in range(2): a.i("ds_read_b128 %s, v%d offset:%d" % (vr(v_T + 4 * kk), v_ord, 8192 + 64 * kk))
            if csel == 2:
                assert S["tkd"]
                a.i("ds_read_b32 v%d, v%d offset:12288" % (v_x, v_zero))
            if tf: stamp()
            for kk in range(2):
                a.i("s_waitcnt lgkmcnt(%d)" % (0 if tf else 1 - kk + (csel == 2)))
                if tf and kk == 0: stamp()
                for nb in range(4):
                    a.i("v_smfmac_f32_16x16x64_bf16 %s, %s, %s, v39" % (vr(S["acc"][nb]), vr(v_T + 4 * kk), vr(slot(S["where"][("wo", 8 * kk + nb)]), 8)))
            if tf: stamp()
            for nb in range(4):
                r = S["acc"][nb]
                a.i("v_pk_add_f32 v[%d:%d], v[%d:%d], v[%d:%d]" % (12 + 4 * nb, 13 + 4 * nb, r, r + 1, r + 2, r + 3))
        elif nt:
            assert S["won"] == 16
            for t in range(4): a.i("v_mul_f32 v%d, v%d, v%d" % (v_D + t, v_f, v_D + t))
            for e in range(2): a.i("v_cvt_pk_bf16_f32 v%d, v%d, v%d" % (v_D + e, v_D + 2 * e, v_D + 2 * e + 1))
            a.i("ds_write_b64 v%d, v[%d:%d] offset:8192" % (v_ldsY, v_D, v_D + 1))
            a.i("s_waitcnt lgkmcnt(0)")
            a.i("s_barrier")
            for kb in range(4): a.i("ds_read_b128 %s, v%d offset:%d" % (vr(v_T + 4 * kb), v_ord, 8192 + 64 * kb))
            if tf: stamp()
            for kb in range(4):
                a.i("s_waitcnt lgkmcnt(%d)" % (0 if tf else 3 - kb))
                if tf and kb == 0: stamp()
                for nb in range(4):
                    acc = 12 + 4 * nb
                    a.i("v_mfma_f32_16x16x32_bf16 %s, %s, %s, %s" % (vr(acc), vr(v_T + 4 * kb), vr(slot(S["where"][("wo", 4 * kb + nb)])), "0" if kb == 0 else vr(acc)))
            if tf: stamp()
        else:
            for t in range(4): a.i("v_mul_f32 v%d, v%d, v%d" % (v_D + t, v_f, v_D + t))
            a.i("ds_write_b128 v%d, %s offset:8192" % (v_ldsD, vr(v_D)))
            a.i("s_waitcnt lgkmcnt(0)")
            a.i("s_barrier")
            for w in range(0, 8, 2):
                a.i("ds_read2st64_b32 v[%d:%d], v%d offset0:%d offset1:%d" % (v_T + w, v_T + w + 1, v_ord, 2 * w, 2 * w + 2))
            a.i("s_waitcnt lgkmcnt(0)")
            for step in (1, 2, 4):
                for w in range(0, 8, 2 * step):
                    a.i("v_add_f32 v%d, v%d, v%d" % (v_T + w, v_T + w, v_T + w + step))
            v_o = v_s[0]
            a.i("v_cvt_pk_bf16_f32 v%d, v%d, v%d" % (v_o, v_T, v_T))
            buildA(v_o, 0, v_A[0])
            for ip in range(4):
                for cb in range(4):
                    c = "0" if ip == 0 else vr(v_T + 4 * cb)
                    need(("wo", 4 * ip + cb))
                    a.i("v_mfma_f32_16x16x32_bf16 %s, %s, %s, %s" % (vr(v_T + 4 * cb), vr(v_A[ip % 2]), vr(slot(S["where"][("wo", 4 * ip + cb)])), c))
                    if cb == 0 and ip < 3: buildA(v_o, ip + 1, v_A[(ip + 1) % 2])
            a.i("s_mov_b32 exec_hi, 0")
            for cb in range(4):
                a.i("ds_write_b128 v%d, %s offset:%d" % (v_ldsY, vr(v_T + 4 * cb), 16384 + cb * 512))
            a.i("s_mov_b32 exec_hi, -1")
            a.i("s_waitcnt lgkmcnt(0)")
            a.i("s_barrier")
    if smode:
        if smode & 1:
            a.i("s_lshr_b32 s%d, s%d, 8" % (s_tmp, SWQ))
            a.i("s_add_u32 s%d, s%d, s%d" % (s_tmp, s_tmp, s_h))
            a.i("s_and_b32 s%d, s%d, 3" % (s_tmp, s_tmp))
            a.i("s_cmp_eq_u32 s%d, 1" % s_tmp)
            a.i("s_cbranch_scc1 L_slow")
        if smode & 2:
            a.i("s_cmp_ge_u32 s%d, 4" % s_wave)
            a.i("s_cbranch_scc1 L_slow")
        S0 = copy.deepcopy(S); vm0 = list(a.vm); n0 = nst[0]
        S["fast"] = 1
        stream_part("_a")
        a.i("s_branch L_join")
        a.label("L_slow")
        a.i("s_nop 7")
        S.clear(); S.update(S0); a.vm = vm0; nst[0] = n0
        S["D"] = Ds or D
        stream_part("_b")
        a.label("L_join")
    else:
        stream_part("_a")
    if nt:
        for nb in range(4): a.i("v_add_f32 v%d, v%d, v%d" % (12 + 4 * nb, 12 + 4 * nb, 13 + 4 * nb))
        a.i("v_permlane32_swap_b32 v12, v16")
        a.i("v_permlane32_swap_b32 v20, v24")
        a.i("v_add_f32 v12, v12, v16")
        a.i("v_add_f32 v20, v20, v24")
        a.i("v_permlane16_swap_b32 v12, v20")
        a.i("v_add_f32 v12, v12, v20")
        a.i("v_and_or_b32 v12, v12, v%d, s%d" % (v_ff, s_tagb))
        if exp == 3 or yh: a.i("s_mov_b32 exec_hi, 0")
        if yh == 2: a.i("s_mov_b32 exec_lo, 0xffff")
        if ysel:
            a.i("s_mov_b32 exec_lo, 0x%x" % ((ysel & 1) * 0xffff + (ysel >> 1 & 1) * 0xffff0000))
            a.i("s_mov_b32 exec_hi, 0x%x" % ((ysel >> 2 & 1) * 0xffff + (ysel >> 3 & 1) * 0xffff0000))
        if exp != 2: a.i("%s v12, v%d, s[%d:%d], s%d offen %s" % ("buffer_atomic_swap" if ym in (3, 4) else "buffer_store_dword", v_y, SWS, SWS + 3, s_ybase, ("sc1", "sc0 sc1", "sc1 nt", "sc1", "sc1 nt", "sc0 sc1 nt", "")[ym]), tag="y")
    else:
        for w in range(0, 8, 2):
            a.i("ds_read2st64_b32 v[%d:%d], v%d offset0:%d offset1:%d" % (v_T + w, v_T + w + 1, v_tid4, 64 + 8 * w, 64 + 8 * w + 8))
        a.i("s_waitcnt lgkmcnt(0)")
        for step in (1, 2, 4):
            for w in range(0, 8, 2 * step):
                a.i("v_add_f32 v%d, v%d, v%d" % (v_T + w, v_T + w, v_T + w + step))
        a.i("v_and_or_b32 v%d, v%d, v%d, s%d" % (v_T, v_T, v_ff, s_tagb))
        a.i("buffer_store_dword v%d, v%d, s[%d:%d], s%d offen sc1" % (v_T, v_y, SWS, SWS + 3, s_ybase), tag="y")
    stamp()
    END = "L_ts" if ts else "L_end1"
    if exp:
        a.i("s_waitcnt vmcnt(0)")
        a.i("s_branch L_ts")
    if yh or ysel: a.i("s_mov_b64 exec, -1")
    if ysel:
        a.i("s_and_b32 s%d, s%d, 3" % (s_tmp, s_h))
        a.i("s_bitcmp1_b32 %d, s%d" % (ysel, s_tmp))
        a.i("s_cbranch_scc0 %s" % END)
    if csel:
        assert CW == 16 and not ins
        s_j = s_p
        if csel == 1:
            a.i("s_and_b32 s%d, s%d, 3" % (s_tmp, s_h))
            a.i("s_cmp_lg_u32 s%d, %d" % (s_tmp, chm))
            a.i("s_cbranch_scc1 %s" % END)
            a.i("s_cmp_ge_u32 s%d, 2" % s_wave)
            a.i("s_cbranch_scc1 %s" % END)
            a.i("s_andn2_b32 s%d, s%d, 3" % (s_j, s_h))
            a.i("s_lshl1_add_u32 s%d, s%d, s%d" % (s_j, s_half, s_j))
            a.i("s_add_u32 s%d, s%d, s%d" % (s_j, s_j, s_wave))
        else:
            a.i("s_waitcnt lgkmcnt(0)")
            a.i("v_readfirstlane_b32 s%d, v%d" % (s_j, v_x))
            a.i("s_cmp_lg_u32 s%d, 255" % s_j)
            a.i("s_cbranch_scc1 L_notlast")
            a.i("s_mov_b64 exec, s[42:43]")
            a.i("v_mov_b32 v%d, s%d" % (v_x, s_tag))
            a.i("buffer_store_dword v%d, v%d, s[%d:%d], s%d offen" % (v_x, v_zero, SWS, SWS + 3, s_epo))
            a.i("s_branch %s" % END)
            a.label("L_notlast")
            a.i("s_cmp_ge_u32 s%d, %d" % (s_j, 128 // cw))
            a.i("s_cbranch_scc1 %s" % END)
            if cw < 8:
                a.i("s_cmp_ge_u32 s%d, %d" % (s_wave, cw))
                a.i("s_cbranch_scc1 %s" % END)
            a.i("s_mul_i32 s%d, s%d, %d" % (s_j, s_j, cw))
            a.i("s_add_u32 s%d, s%d, s%d" % (s_j, s_j, s_wave))
            a.i("s_lshr_b32 s%d, s%d, 5" % (s_grp, s_j))
            a.i("s_and_b32 s%d, s%d, 31" % (s_j, s_j))
            a.i("s_lshr_b32 s%d, s%d, 1" % (s_br, s_grp))
            a.i("s_and_b32 s%d, s%d, 1" % (s_b, s_grp))
        a.i("s_lshl_b32 s%d, s%d, 17" % (s_inbox, s_grp))
        a.i("s_lshl_b32 s%d, s%d, 12" % (s_tmp, s_j))
        a.i("s_add_u32 s%d, s%d, s%d" % (s_inbox, s_inbox, s_tmp))
        a.i("s_lshl_b32 s%d, s%d, 11" % (s_outoff, s_b))
        a.i("s_lshl_b32 s%d, s%d, 10" % (s_tmp, s_br))
        a.i("s_add_u32 s%d, s%d, s%d" % (s_outoff, s_outoff, s_tmp))
        if ycm:
            a.i("s_lshr_b32 s%d, s%d, 2" % (s_tmp, s_j))
            a.i("s_lshl_b32 s%d, s%d, 7" % (s_tmp, s_tmp))
            a.i("s_add_u32 s%d, s%d, s%d" % (s_outoff, s_outoff, s_tmp))
            a.i("s_bfe_u32 s%d, s%d, 0x10001" % (s_tmp, s_j))
            a.i("s_lshl_b32 s%d, s%d, 3" % (s_tmp, s_tmp))
            a.i("s_add_u32 s%d, s%d, s%d" % (s_outoff, s_outoff, s_tmp))
            a.i("s_and_b32 s%d, s%d, 1" % (s_tmp, s_j))
            a.i("s_lshl_b32 s%d, s%d, 4" % (s_tmp, s_tmp))
        else:
            a.i("s_lshl_b32 s%d, s%d, 5" % (s_tmp, s_j))
        a.i("s_add_u32 s%d, s%d, s%d" % (s_outoff, s_outoff, s_tmp))
    else:
        if NC < 64:
            a.i("s_and_b32 s%d, s%d, %d" % (s_tmp, s_p, (64 // NC - 1) | (0, 4, 6)[yh]))
            a.i("s_cbranch_scc1 %s" % END)
        if pbar: a.i("s_barrier")
        a.i("s_cmp_lg_u32 s%d, 0" % s_wave)
        a.i("s_cbranch_scc1 %s" % END)
    a.vm = []
    NL = CW // 4
    vy, vt = 64, 128
    Q = CW // 4
    a.i("v_lshlrev_b32 v%d, 4, v%d" % (vt, v_lane))
    a.i("v_add_u32 v%d, 0x1000, v%d" % (vt + 1, vt))
    a.i("s_mov_b32 s%d, %d" % (s_spin, NSPIN))
    a.i("v_bfe_u32 v%d, v%d, 4, 1" % (vt + 2, v_lane))
    a.i("v_bfe_u32 v%d, v%d, 5, 1" % (vt + 3, v_lane))
    a.i("v_lshl_add_u32 v%d, v%d, 1, v%d" % (vt + 2, vt + 2, vt + 3))
    a.i("v_and_b32 v%d, %d, v%d" % (vt + 3, Q - 1, v_lane))
    a.i("v_lshl_add_u32 v%d, v%d, %d, v%d" % (vt + 2, vt + 3, 4 if ycm else 2, vt + 2))
    a.i("v_lshlrev_b32 v%d, 1, v%d" % (vt + 2, vt + 2))
    if outw:
        a.i("buffer_load_ushort v%d, v%d, s[%d:%d], s%d offen" % (vt + 5, vt + 2, SOUT, SOUT + 3, s_outoff))
        a.vm = []
    if pm:
        s_mk = 44
        s_u = 60
        def ld(k):
            a.i("buffer_load_dwordx4 %s, v%d, s[%d:%d], s%d offen offset:%d %s" % (vr(vy + 4 * k), vt + (k >> 2), SWS, SWS + 3, s_inbox, (k & 3) * 1024, ("sc1", "sc0 sc1", "sc1 nt", "sc0 sc1 nt")[plm]))
            a.vm = []
        for k in range(NL): ld(k)
        a.label("L_slowp")
        a.i("s_waitcnt vmcnt(0)")
        a.label("L_chk")
        ck = vt + 8
        for t in range(4):
            for k in range(NL):
                if t == 0: a.i("v_xor_b32 v%d, s%d, v%d" % (ck + k, s_tagb, vy + 4 * k))
                else: a.i("v_bitop3_b32 v%d, v%d, s%d, v%d bitop3:0xf6" % (ck + k, ck + k, s_tagb, vy + 4 * k + t))
        for k in range(NL): a.i("v_and_b32 v%d, 0xff, v%d" % (ck + k, ck + k))
        for k in range(NL): a.i("v_cmp_ne_u32 s[%d:%d], 0, v%d" % (s_mk + 2 * k, s_mk + 2 * k + 1, ck + k))
        a.i("s_or_b64 s[%d:%d], s[%d:%d], s[%d:%d]" % (s_u, s_u + 1, s_mk, s_mk + 1, s_mk + 2, s_mk + 3))
        for k in range(2, NL): a.i("s_or_b64 s[%d:%d], s[%d:%d], s[%d:%d]" % (s_u, s_u + 1, s_u, s_u + 1, s_mk + 2 * k, s_mk + 2 * k + 1))
        a.i("s_cbranch_scc0 L_poll_ok")
        for k in range(NL):
            a.i("s_mov_b64 exec, s[%d:%d]" % (s_mk + 2 * k, s_mk + 2 * k + 1))
            ld(k)
        a.i("s_mov_b64 exec, -1")
        a.i("s_sub_u32 s%d, s%d, 1" % (s_spin, s_spin))
        a.i("s_cbranch_scc1 L_poll_ok")
        a.i("s_bcnt1_i32_b64 s%d, s[%d:%d]" % (s_tmp, s_u, s_u + 1))
        a.i("s_waitcnt vmcnt(%d)" % (NL * pcap))
        a.i("s_cmp_le_u32 s%d, %d" % (s_tmp, pth))
        a.i("s_cbranch_scc1 L_chk")
        if psl: a.i("s_sleep %d" % psl)
        a.i("s_branch L_slowp")
    else:
        a.label("L_poll")
        for k in range(NL):
            a.i("buffer_load_dwordx4 %s, v%d, s[%d:%d], s%d offen offset:%d sc1" % (vr(vy + 4 * k), vt + (k >> 2), SWS, SWS + 3, s_inbox, (k & 3) * 1024), tag=("y", k))
        chk = vt + 4
        for k in range(NL):
            a.wait_vm(("y", k))
            for t in range(4):
                if k == 0 and t == 0: a.i("v_xor_b32 v%d, s%d, v%d" % (chk, s_tagb, vy))
                else: a.i("v_bitop3_b32 v%d, v%d, s%d, v%d bitop3:0xf6" % (chk, chk, s_tagb, vy + 4 * k + t))
            if k > 0:
                for t in range(4):
                    a.i("v_add_f32 v%d, v%d, v%d" % (vy + t, vy + t, vy + 4 * k + t))
        a.i("v_and_b32 v%d, 0xff, v%d" % (chk, chk))
        a.i("v_cmp_ne_u32 vcc, 0, v%d" % chk)
        a.i("s_cbranch_vccz L_poll_ok")
        a.i("s_sub_u32 s%d, s%d, 1" % (s_spin, s_spin))
        a.i("s_cbranch_scc1 L_poll_ok")
        if sleep: a.i("s_sleep %d" % sleep)
        a.i("s_branch L_poll")
    a.label("L_poll_ok")
    if tf: stamp()
    vacc = vy
    if pm:
        vacc = vt + 16
        for k in range(0, NL, 2):
            for t in range(4): a.i("v_add_f32 v%d, v%d, v%d" % (vacc + 2 * k + t, vy + 4 * k + t, vy + 4 * k + 4 + t))
        st_ = 2
        while st_ < NL:
            for k in range(0, NL, 2 * st_):
                for t in range(4): a.i("v_add_f32 v%d, v%d, v%d" % (vacc + 2 * k + t, vacc + 2 * k + t, vacc + 2 * (k + st_) + t))
            st_ *= 2
    a.i("v_permlane32_swap_b32 v%d, v%d" % (vacc, vacc + 1))
    a.i("v_permlane32_swap_b32 v%d, v%d" % (vacc + 2, vacc + 3))
    a.i("v_add_f32 v%d, v%d, v%d" % (vacc, vacc, vacc + 1))
    a.i("v_add_f32 v%d, v%d, v%d" % (vacc + 2, vacc + 2, vacc + 3))
    a.i("v_permlane16_swap_b32 v%d, v%d" % (vacc, vacc + 2))
    a.i("v_add_f32 v%d, v%d, v%d" % (vacc, vacc, vacc + 2))
    if Q <= 2: a.i("v_add_f32_dpp v%d, v%d, v%d quad_perm:[2,3,0,1] row_mask:0xf bank_mask:0xf" % (vacc, vacc, vacc))
    if Q <= 4: a.i("v_add_f32_dpp v%d, v%d, v%d row_ror:4 row_mask:0xf bank_mask:0xf" % (vacc, vacc, vacc))
    a.i("v_add_f32_dpp v%d, v%d, v%d row_ror:8 row_mask:0xf bank_mask:0xf" % (vacc, vacc, vacc))
    a.i("v_cvt_pk_bf16_f32 v%d, v%d, v%d" % (vacc, vacc, vacc))
    em = ((1 << Q) - 1) * 0x00010001
    a.i("s_mov_b32 exec_lo, 0x%08x" % em)
    a.i("s_mov_b32 exec_hi, 0x%08x" % em)
    a.i("buffer_store_short v%d, v%d, s[%d:%d], s%d offen%s" % (vacc, vt + 2, SOUT, SOUT + 3, s_outoff, ("", " sc1", " sc0 sc1", " nt")[osc]))
    if csel != 2:
        a.i("s_cmp_lg_u32 s%d, 0" % s_p)
        a.i("s_cbranch_scc1 L_noep")
        a.i("s_mov_b64 exec, 1")
        a.i("v_mov_b32 v%d, s%d" % (vt + 4, s_tag))
        a.i("buffer_store_dword v%d, v%d, s[%d:%d], s%d offen%s" % (vt + 4, v_zero, SWS, SWS + 3, s_epo, ("", " sc1", " sc0 sc1", " nt")[osc]))
        a.label("L_noep")
    if pad:
        a.i("s_add_u32 s98, s98, %d" % pad)
        a.label("L_pad")
        a.i("s_memrealtime s[100:101]")
        a.i("s_waitcnt lgkmcnt(0)")
        a.i("s_sub_u32 s100, s100, s98")
        a.i("s_cmp_lt_i32 s100, 0")
        a.i("s_cbranch_scc1 L_pad")
    if ts:
        a.label("L_ts")
        a.i("s_nop 7")
        stamp()
        a.i("s_waitcnt lgkmcnt(0)")
        a.i("s_mov_b64 exec, 1")
        a.i("s_lshl_b32 s%d, s2, 3" % s_off)
        a.i("s_add_u32 s%d, s%d, s%d" % (s_off, s_off, s_wave))
        a.i("s_lshl_b32 s%d, s%d, 6" % (s_off, s_off))
        a.i("s_add_u32 s%d, s%d, 0x%x" % (s_off, s_off, WS_TS))
        a.i("v_mov_b32 v%d, s98" % (v_T))
        a.i("v_mov_b32 v%d, s100" % (v_T + 1))
        assert nst[0] <= 13
        print("stamps:", nst[0] + 2)
        for k in range(nst[0]):
            a.i("v_mov_b32 v%d, s%d" % (v_T + 2 + k, s_ts + 2 * k))
        a.i("s_getreg_b32 s%d, hwreg(HW_REG_XCC_ID)" % s_tmp)
        a.i("s_lshl_b32 s%d, s%d, 16" % (s_tmp, s_tmp))
        a.i("s_add_u32 s%d, s%d, s%d" % (s_tmp, s_tmp, s_id))
        a.i("s_getreg_b32 s42, hwreg(HW_REG_HW_ID, 8, 8)")
        a.i("s_lshl_b32 s42, s42, 24")
        a.i("s_add_u32 s%d, s%d, s42" % (s_tmp, s_tmp))
        a.i("v_mov_b32 v%d, s%d" % (v_T + 15, s_tmp))
        if nst[0] <= 12: a.i("v_mov_b32 v%d, s43" % (v_T + 14))
        for k in range(4):
            a.i("buffer_store_dwordx4 %s, v%d, s[%d:%d], s%d offen offset:%d" % (vr(v_T + 4 * k), v_zero, SWS, SWS + 3, s_off, 16 * k))
    a.label("L_end1")
    a.i("s_endpgm")
    k1 = a.text() + kd(kname, 256, 102)
    head = HDR + "; @launch grid=(256,1,1) block=(512,1,1) lds=%d\n" % (49152 if nt else 32768)
    head += '.amdgcn_target "amdgcn-amd-amdhsa--gfx950"\n.text\n'
    return head + k1

if __name__ == "__main__":
    out = sys.argv[1]
    kw = {}
    for arg in sys.argv[2:]:
        k, v = arg.split("=")
        kw[k] = int(v, 0)
    open(out, "w").write(gen(**kw))
```
